```python
import torch

def _softmax(x, axis=-1):
    return torch.softmax(x, dim=axis)
def _gelu(x):
    return torch.nn.functional.gelu(x, approximate="tanh")
def _silu(x):
    return torch.nn.functional.silu(x)
def _sigmoid(x):
    return torch.sigmoid(x)
def _layernorm(x, axis=-1, eps=1e-5):
    m = x.mean(dim=axis, keepdim=True)
    v = x.var(dim=axis, keepdim=True, unbiased=False)
    return (x - m) / torch.sqrt(v + eps)
def _scatter_add(tgt, idx, src, axis=0):
    return tgt.clone().index_add_(axis, idx, src)
def _segment_sum(src, seg, n):
    out = torch.zeros((n,) + src.shape[1:], dtype=src.dtype)
    return out.index_add_(0, seg, src)
def _pad(x, pw):
    flat = tuple(v for pair in reversed(pw) for v in pair)
    return torch.nn.functional.pad(x, flat)

kernel_name = 'concat_heads__mha_block_cached__gqa_block_cached__near_ridge'

def setup_inputs():

    _w = (lambda a: (lambda t: t.to(torch.bfloat16) if t.is_floating_point() else t)(torch.as_tensor(a)))
    def _A_setup():
        B, Sq, D = 8, 240, 512
        H, Sk, Dh = 32, 512, 128
        return {
            "x": _w((lambda *s: torch.randn(*s, dtype=torch.bfloat16) * 0.8)(B, Sq, D)),
            "k_cache": _w((lambda *s: torch.randn(*s, dtype=torch.bfloat16) * 0.8)(B, H, Sk, Dh)),
            "v_cache": _w((lambda *s: torch.randn(*s, dtype=torch.bfloat16) * 0.05)(B, H, Sk, Dh)),
            "wq": _w((lambda *s: torch.randn(*s, dtype=torch.bfloat16) * 0.8)(D, H * Dh) * (D ** -0.5)),
            "wo": _w((lambda *s: torch.randn(*s, dtype=torch.bfloat16) * 0.05)(H * Dh, D) * ((H * Dh) ** -0.5)),
        }
    _A_in = _A_setup()

    def _B_setup():
        B, Sq, D = 8, 240, 512
        Hq, Hkv, Sk, Dh = 32, 32, 512, 128
        assert Hq % Hkv == 0, (Hq, Hkv)
        return {
            "x": _w((lambda *s: torch.randn(*s, dtype=torch.bfloat16) * 0.8)(B, Sq, D)),
            "k_cache": _w((lambda *s: torch.randn(*s, dtype=torch.bfloat16) * 0.8)(B, Hkv, Sk, Dh)),
            "v_cache": _w((lambda *s: torch.randn(*s, dtype=torch.bfloat16) * 0.05)(B, Hkv, Sk, Dh)),
            "wq": _w((lambda *s: torch.randn(*s, dtype=torch.bfloat16) * 0.8)(D, Hq * Dh) * (D ** -0.5)),
            "wo": _w((lambda *s: torch.randn(*s, dtype=torch.bfloat16) * 0.05)(Hq * Dh, D) * ((Hq * Dh) ** -0.5)),
        }
    _B_in = _B_setup()

    return {
        "A_x": _A_in["x"],
        "A_k_cache": _A_in["k_cache"],
        "A_v_cache": _A_in["v_cache"],
        "A_wq": _A_in["wq"],
        "A_wo": _A_in["wo"],
        "B_x": _B_in["x"],
        "B_k_cache": _B_in["k_cache"],
        "B_v_cache": _B_in["v_cache"],
        "B_wq": _B_in["wq"],
        "B_wo": _B_in["wo"],
    }

def reference(A_x, A_k_cache, A_v_cache, A_wq, A_wo, B_x, B_k_cache, B_v_cache, B_wq, B_wo):
    def _A_ref(x, k_cache, v_cache, wq, wo):
        B, Sq, D = x.shape
        H, Dh = 32, 128
        q = (lambda x, *d: x.permute(*d))((x @ wq).reshape(B, Sq, H, Dh), 0, 2, 1, 3)
        scores = torch.einsum("bhqd,bhkd->bhqk", q, k_cache) * (Dh ** -0.5)
        p = _softmax(scores, axis=-1)
        o = torch.einsum("bhqk,bhkd->bhqd", p, v_cache)
        return (lambda x, *d: x.permute(*d))(o, 0, 2, 1, 3).reshape(B, Sq, H * Dh) @ wo

    def _B_ref(x, k_cache, v_cache, wq, wo):
        B, Sq, D = x.shape
        Hq, Dh = 32, 128
        Hkv = k_cache.shape[1]
        rep = Hq // Hkv
        q = (lambda x, *d: x.permute(*d))((x @ wq).reshape(B, Sq, Hq, Dh), 0, 2, 1, 3)
        k = (lambda x, n, axis: torch.repeat_interleave(x, n, dim=axis))(k_cache, rep, axis=1)
        v = (lambda x, n, axis: torch.repeat_interleave(x, n, dim=axis))(v_cache, rep, axis=1)
        scores = torch.einsum("bhqd,bhkd->bhqk", q, k) * (Dh ** -0.5)
        p = _softmax(scores, axis=-1)
        o = torch.einsum("bhqk,bhkd->bhqd", p, v)
        return (lambda x, *d: x.permute(*d))(o, 0, 2, 1, 3).reshape(B, Sq, Hq * Dh) @ wo

    a = _A_ref(A_x, A_k_cache, A_v_cache, A_wq, A_wo)
    b = _B_ref(B_x, B_k_cache, B_v_cache, B_wq, B_wo)
    return torch.concatenate([a, b], axis=-1)
```

```python
import re

def vr(a, n=1):
    return f"v{a}" if n == 1 else f"v[{a}:{a+n-1}]"
def sr(a, n=1):
    return f"s{a}" if n == 1 else f"s[{a}:{a+n-1}]"
def V(a, n=1):
    return [('v', a+i) for i in range(n)]
def S(a, n=1):
    return [('s', a+i) for i in range(n)]

class Ins:
    __slots__ = ('text','kind','rd','wr','tag','srcc','meta')
    def __init__(self, text, kind, rd=(), wr=(), tag=None, srcc=(), meta=None):
        self.text=text; self.kind=kind; self.rd=list(rd); self.wr=list(wr); self.tag=tag
        self.srcc=list(srcc); self.meta=meta

class Prog:
    def __init__(self):
        self.ins = []
    def add(self, i):
        self.ins.append(i); return i
    def raw(self, text, kind='other', rd=(), wr=(), tag=None):
        return self.add(Ins(text, kind, rd, wr, tag))
def mfma(d, a, b, c=None):
    ctext = '0' if c is None else vr(c,16)
    rd = V(a,4)+V(b,4)+([] if c is None else V(c,16))
    return Ins(f"v_mfma_f32_32x32x16_bf16 {vr(d,16)}, {vr(a,4)}, {vr(b,4)}, {ctext}", 'mfma', rd, V(d,16),
               srcc=([] if c is None else V(c,16)), meta=(d, c))
def valu(text, rd, wr, kind='valu'):
    return Ins(text, kind, rd, wr)
def ds_read_b128(d, addr, off):
    return Ins(f"ds_read_b128 {vr(d,4)}, {vr(addr)} offset:{off}", 'ldsr', V(addr), V(d,4))
def ds_read_tr(d, addr, off):
    return Ins(f"ds_read_b64_tr_b16 {vr(d,2)}, {vr(addr)} offset:{off}", 'ldsr', V(addr), V(d,2))
def ds_write_b128(addr, s, off):
    return Ins(f"ds_write_b128 {vr(addr)}, {vr(s,4)} offset:{off}", 'ldsw', V(addr)+V(s,4), [])
def salu(text, rd=(), wr=()):
    return Ins(text, 'salu', rd, wr)

def finalize(ins_list, lgkm_max=15, vm_max=63):
    out = []
    lg = []
    vm = []
    def need_wait(regs):
        nl = None; nv = None
        rs = set(regs)
        for idx, w in enumerate(lg):
            if w & rs: nl = len(lg)-1-idx
        for idx, (w, t) in enumerate(vm):
            if w & rs: nv = len(vm)-1-idx
        return nl, nv
    def emit_wait(nl, nv):
        nonlocal lg, vm
        parts=[]
        if nv is not None:
            nv=min(nv, vm_max); parts.append(f"vmcnt({nv})"); vm = vm[len(vm)-nv:] if nv>0 else []
        if nl is not None:
            nl=min(nl, lgkm_max); parts.append(f"lgkmcnt({nl})"); lg = lg[len(lg)-nl:] if nl>0 else []
        if parts:
            out.append(Ins("s_waitcnt "+" ".join(parts), 'wait'))
    for i in ins_list:
        if i.kind == 'waittag':
            tags, drain = i.meta
            nv=None
            for idx,(w,t) in enumerate(vm):
                if t in tags: nv=len(vm)-1-idx
            emit_wait(0 if drain else None, nv)
            continue
        if i.kind == 'resetcnt':
            lg=[]; vm=[]; continue
        nl, nv = need_wait(i.rd + i.wr)
        emit_wait(nl, nv)
        out.append(i)
        if i.kind in ('ldsr','ldsw'):
            lg.append(set(i.wr))
            assert len(lg) <= 64
        elif i.kind in ('vmem_ld','dma','vmem_st'):
            vm.append((set(i.wr), i.tag))
            if len(vm) > vm_max:
                raise Exception("too many vm outstanding")
    res = []
    last = {}
    pos = 0
    srcc_rd = {}
    st_rd = {}
    m0pos = -100
    def states(i):
        if i.kind=='nop':
            return int(i.text.split()[1])+1
        if i.kind in ('label',): return 0
        return 1
    for i in out:
        need = 0
        def req(prodpos, n):
            nonlocal need
            d = pos - prodpos - 1
            if d < n: need = max(need, n-d)
        isvalu = i.kind in ('valu','trans','perm')
        for r in i.rd:
            if r in last:
                k,p,ex = last[r]
                if k in ('valu','trans','perm'):
                    if i.kind=='mfma': req(p,2)
                    if i.kind=='perm': req(p,2)
                    if k=='trans' and isvalu: req(p,1)
                    if r[0]=='s':
                        if isvalu: req(p,2)
                        if i.kind in ('vmem_ld','dma','vmem_st'): req(p,5)
                    if i.text.startswith('v_readfirstlane') or i.text.startswith('v_readlane'): req(p,1)
                if k=='mfma':
                    if i.kind=='mfma':
                        if r in i.srcc:
                            if not (i.meta[1]==ex): req(p,10)
                        else: req(p,12)
                    else: req(p,12)
        for r in i.wr:
            if r in last:
                k,p,ex = last[r]
                if k=='mfma' and i.kind!='mfma': req(p,12)
                if k=='mfma' and i.kind=='mfma' and not (i.meta[1]==ex and i.meta[0]==ex):
                    req(p,12)
            if r in srcc_rd and isvalu: req(srcc_rd[r],7)
            if r in st_rd: req(st_rd[r], 2)
        if i.kind=='dma': req(m0pos,1)
        while need>0:
            n=min(need,16)
            res.append(Ins(f"s_nop {n-1}",'nop')); pos+=n; need-=n
        res.append(i)
        for r in i.wr:
            last[r]=(i.kind,pos,(i.meta[0] if i.kind=='mfma' else None))
        if i.kind=='mfma':
            for r in i.srcc: srcc_rd[r]=pos
        if i.kind=='vmem_st':
            for r in i.rd: st_rd[r]=pos
        if any(r==('s','m0') for r in i.wr): m0pos=pos
        pos+=states(i)
    return res

def render(ins):
    lines=[]
    for i in ins:
        if i.kind=='label': lines.append(i.text)
        else: lines.append("    "+i.text)
    return "\n".join(lines)+"\n"
```

```python
import sys, math
sys.path.insert(0, "dev")
from asmlib import *
M0 = ('s','m0')

def gen_k2(D=4, PF=3):
    P=[]; add=P.append
    def sa(t, rd=(), wr=()): add(salu(t, rd, wr))
    def va(t, rd=(), wr=(), kind='valu'): add(valu(t, rd, wr, kind))
    sPROB, sMG, sN, sW, sW4096, sT, sWOB, sOB, sT2 = 64,65,66,67,68,69,70,71,72
    SRDW, SRDS, SRDO = 44,48,52
    ACC=0
    BF=32
    FR=160
    AW=200
    vDW, vB, vO = 204,205,206
    t0,t1,t2,t3,t4,t5 = 210,211,212,213,214,215
    NF=D+2
    add(Ins("s_cmp_ge_u32 s2, 256", 'salu'))
    add(Ins("s_cbranch_scc1 L_k2_end", 'branch'))
    add(Ins("s_load_dwordx2 s[16:17], s[0:1], 32", 'other'))
    add(Ins("s_load_dwordx4 s[20:23], s[0:1], 72", 'other'))
    add(Ins("s_load_dwordx2 s[24:25], s[0:1], 96", 'other'))
    sa("s_and_b32 s3, s2, 7")
    sa("s_lshr_b32 s4, s2, 3")
    sa(f"s_lshr_b32 s{sPROB}, s3, 2")
    sa("s_and_b32 s3, s3, 3")
    sa("s_lshl_b32 s3, s3, 2")
    sa("s_lshr_b32 s5, s4, 3")
    sa(f"s_add_u32 s{sMG}, s3, s5")
    sa(f"s_and_b32 s{sN}, s4, 7")
    va(f"v_lshrrev_b32 v{t0}, 6, v0", V(0), V(t0))
    va(f"v_and_b32 v0, 63, v0", V(0), V(0))
    va(f"v_readfirstlane_b32 s{sW}, v{t0}", V(t0), S(sW))
    add(Ins("s_waitcnt lgkmcnt(0)", 'wait'))
    sa(f"s_lshl_b32 s{sW4096}, s{sW}, 12", S(sW))
    sa(f"s_cmp_eq_u32 s{sPROB}, 0")
    sa(f"s_cselect_b64 s[{SRDW}:{SRDW+1}], s[16:17], s[20:21]")
    sa(f"s_mov_b64 s[{SRDS}:{SRDS+1}], s[24:25]")
    sa(f"s_mov_b64 s[{SRDO}:{SRDO+1}], s[22:23]")
    for srd,n in ((SRDW,4194304),(SRDS,33554432),(SRDO,3932160)):
        sa(f"s_mov_b32 s{srd+2}, {n}")
        sa(f"s_mov_b32 s{srd+3}, 0x20000")
    sa(f"s_lshl_b32 s{sWOB}, s{sN}, 7")
    sa(f"s_lshl_b32 s4, s{sPROB}, 6")
    sa(f"s_lshl_b32 s5, s{sMG}, 2")
    sa(f"s_add_u32 s4, s4, s5")
    sa(f"s_and_b32 s5, s{sW}, 3")
    sa(f"s_add_u32 s4, s4, s5")
    sa(f"s_lshl_b32 s4, s4, 8")
    sa(f"s_lshr_b32 s5, s{sW}, 2")
    sa(f"s_lshl_b32 s5, s5, 7")
    sa(f"s_add_u32 s4, s4, s5")
    sa(f"s_lshl_b32 s{sOB}, s4, 10")
    va(f"v_lshrrev_b32 v{t1}, 3, v0", V(0), V(t1))
    va(f"v_bfe_u32 v{t2}, v0, 4, 1", V(0), V(t2))
    va(f"v_lshlrev_b32 v{t2}, 2, v{t2}", V(t2), V(t2))
    va(f"v_and_b32 v{t3}, 7, v0", V(0), V(t3))
    va(f"v_xor_b32 v{t2}, v{t2}, v{t3}", V(t2)+V(t3), V(t2))
    va(f"v_lshlrev_b32 v{t2}, 4, v{t2}", V(t2), V(t2))
    va(f"v_lshl_add_u32 v{vDW}, v{t1}, 10, v{t2}", V(t1)+V(t2), V(vDW))
    va(f"v_lshrrev_b32 v{t1}, 2, v{t0}", V(t0), V(t1))
    va(f"v_lshl_add_u32 v{vDW}, v{t1}, 21, v{vDW}", V(t1)+V(vDW), V(vDW))
    va(f"v_and_b32 v{t1}, 3, v{t0}", V(t0), V(t1))
    va(f"v_lshl_add_u32 v{vDW}, v{t1}, 15, v{vDW}", V(t1)+V(vDW), V(vDW))
    va(f"v_lshlrev_b32 v{vB}, 4, v0", V(0), V(vB))
    def dmaW(st):
        for i in range(4):
            add(salu(f"s_add_u32 m0, s{sW4096}, {(st&3)*32768+i*1024}", S(sW4096), [M0]))
            add(salu(f"s_add_u32 s{sT}, s{sWOB}, {st*131072+i*8192}", S(sWOB), S(sT)))
            add(Ins(f"buffer_load_dwordx4 v{vDW}, s[{SRDW}:{SRDW+3}], s{sT} offen lds", 'dma', V(vDW)+S(sT)+[M0], [], ('W',st)))
    def ldB(st):
        add(salu(f"s_add_u32 s{sT2}, s{sOB}, {st*8192}", S(sOB), S(sT2)))
        for k in range(8):
            if k==4: add(salu(f"s_add_u32 s{sT2}, s{sOB}, {st*8192+4096}", S(sOB), S(sT2)))
            d = BF + (st&3)*32 + 4*k
            add(Ins(f"buffer_load_dwordx4 {vr(d,4)}, v{vB}, s[{SRDS}:{SRDS+3}], s{sT2} offen offset:{(k&3)*1024}",
                    'vmem_ld', V(vB)+S(sT2), V(d,4)))
    for st in range(PF):
        dmaW(st); ldB(st)
    va(f"v_lshrrev_b32 v{t1}, 5, v0", V(0), V(t1))
    va(f"v_bfe_u32 v{t2}, v0, 2, 2", V(0), V(t2))
    va(f"v_bfe_u32 v{t3}, v0, 4, 1", V(0), V(t3))
    va(f"v_and_b32 v{t5}, 1, v0", V(0), V(t5))
    va(f"v_lshl_add_u32 v{t3}, v{t3}, 1, v{t5}", V(t3)+V(t5), V(t3))
    va(f"v_lshlrev_b32 v{t3}, 4, v{t3}", V(t3), V(t3))
    va(f"v_bfe_u32 v{t5}, v0, 1, 1", V(0), V(t5))
    va(f"v_lshl_add_u32 v{t3}, v{t5}, 3, v{t3}", V(t3)+V(t5), V(t3))
    va(f"v_lshl_add_u32 v{t5}, v{t1}, 3, v{t2}", V(t1)+V(t2), V(t5))
    va(f"v_lshl_add_u32 v{t5}, v{t5}, 7, v{t3}", V(t5)+V(t3), V(t5))
    va(f"v_lshrrev_b32 v{t4}, 2, v{t0}", V(t0), V(t4))
    va(f"v_lshl_add_u32 v{t5}, v{t4}, 14, v{t5}", V(t4)+V(t5), V(t5))
    va(f"v_lshrrev_b32 v{t2}, 1, v{t2}", V(t2), V(t2))
    for t in range(2):
        va(f"v_xor_b32 v{AW+t}, {t}, v{t2}", V(t2), V(AW+t))
        va(f"v_lshl_add_u32 v{AW+t}, v{AW+t}, 6, v{t5}", V(AW+t)+V(t5), V(AW+t))
        va(f"v_add_u32 v{AW+2+t}, 0x10000, v{AW+t}", V(AW+t), V(AW+2+t))
    sa(f"s_lshl_b32 s4, s{sMG}, 2")
    sa(f"s_and_b32 s5, s{sW}, 3")
    sa(f"s_add_u32 s4, s4, s5")
    sa(f"s_lshr_b32 s5, s4, 3")
    sa(f"s_and_b32 s4, s4, 7")
    sa(f"s_mul_i32 s5, s5, 240")
    sa(f"s_lshl_b32 s6, s4, 5")
    sa(f"s_add_u32 s5, s5, s6")
    sa(f"s_lshl_b32 s5, s5, 11")
    sa(f"s_lshl_b32 s6, s{sPROB}, 10")
    sa(f"s_add_u32 s5, s5, s6")
    sa(f"s_add_u32 s73, s5, s{sWOB}")
    va(f"v_and_b32 v{t4}, 31, v0", V(0), V(t4))
    va(f"v_lshlrev_b32 v{vO}, 11, v{t4}", V(t4), V(vO))
    va(f"v_lshl_add_u32 v{vO}, v{t1}, 4, v{vO}", V(t1)+V(vO), V(vO))
    sa(f"s_lshl_b32 s6, s4, 5")
    va(f"v_add_u32 v{t4}, s6, v{t4}", V(t4), V(t4))
    va(f"v_mov_b32 v{t3}, 0x40000000", [], V(t3))
    va(f"v_cmp_gt_u32 vcc, 240, v{t4}", V(t4), [('s','vcc')])
    add(Ins("s_nop 1", 'nop'))
    va(f"v_cndmask_b32 v{vO}, v{t3}, v{vO}, vcc", V(t3)+V(vO), V(vO))
    ops=[]; bp={}
    for st in range(16):
        for s in range(8):
            for t in range(2):
                areg = AW + t + (2 if (st&3)>=2 else 0)
                off = (st&1)*32768 + s*2048
                bb = BF + (st&3)*32 + 4*s
                first = (st==0 and s==0)
                ops.append(dict(step=st,
                    reads=(lambda f, areg=areg, off=off: [ds_read_tr(f, areg, off), ds_read_tr(f+2, areg, off+512)]),
                    m=(lambda f, t=t, bb=bb, first=first: mfma(ACC+16*t, f, bb, None if first else ACC+16*t))))
        def bpf(st=st):
            add(Ins("", 'waittag', meta=([('W',st+1)], True)))
            add(Ins("s_barrier", 'barrier'))
            if st+PF+0 <= 15 and PF==4: pass
            if st+4 <= 15: dmaW(st+4)
        bp[st]=bpf
    N=len(ops)
    dmaW(3); ldB(3)
    add(Ins("", 'waittag', meta=([('W',0)], False)))
    add(Ins("s_barrier", 'barrier'))
    def fr(i): return FR+4*(i%NF)
    for i in range(D):
        for r in ops[i]['reads'](fr(i)): add(r)
    for i in range(N):
        if i+D<N:
            if ops[i+D]['step']!=ops[i+D-1]['step']:
                bp[ops[i+D-1]['step']]()
            for r in ops[i+D]['reads'](fr(i+D)): add(r)
        add(ops[i]['m'](fr(i)))
        if i%16==15 and ops[i]['step']+4<=15:
            ldB(ops[i]['step']+4)
    add(Ins("", 'waittag', meta=([], True)))
    add(Ins("s_barrier", 'barrier'))
    sa(f"s_and_b32 s4, s{sW}, 3")
    sa(f"s_lshl_b32 s4, s4, 13")
    va(f"v_add_u32 v{t1}, s4, v{vB}", V(vB), V(t1))
    sa(f"s_cmp_lt_u32 s{sW}, 4")
    add(Ins("s_cbranch_scc1 L_k2_lo", 'branch'))
    for c in range(8):
        add(ds_write_b128(t1, ACC+4*c, c*1024))
    add(Ins("s_waitcnt lgkmcnt(0)", 'wait'))
    add(Ins("s_barrier", 'barrier'))
    add(Ins("s_branch L_k2_end", 'branch'))
    add(Ins("L_k2_lo:", 'label'))
    add(Ins("", 'resetcnt'))
    add(Ins("s_barrier", 'barrier'))
    for c in range(8):
        add(ds_read_b128(BF+4*c, t1, c*1024))
    for i in range(32):
        va(f"v_add_f32 v{ACC+i}, v{ACC+i}, v{BF+i}", V(ACC+i)+V(BF+i), V(ACC+i))
    for t in range(2):
        for h in range(2):
            base=ACC+16*t+8*h
            for jj in range(4):
                va(f"v_cvt_pk_bf16_f32 v{base+jj}, v{base+2*jj}, v{base+2*jj+1}", V(base+2*jj,2), V(base+jj))
            add(Ins(f"buffer_store_dwordx4 {vr(base,4)}, v{vO}, s[{SRDO}:{SRDO+3}], s73 offen offset:{64*t+32*h}",
                    'vmem_st', V(base,4)+V(vO), []))
    body = render(finalize(P))
    return (body + "L_k2_end:\n    s_endpgm\n", 131072, 216)
```

```python
import sys, math
sys.path.insert(0, "dev")
from asmlib import *

NAME = "concat_heads__mha_block_cached__gqa_block_cached__near_ridge"
M0 = ('s','m0')

def gen_k1(D=6, THR=8.0):
    P = []
    add = P.append
    def sa(t, rd=(), wr=()): add(salu(t, rd, wr))
    def va(t, rd=(), wr=(), kind='valu'): add(valu(t, rd, wr, kind))
    sBLK, sB, sHP, sW1024, sXOFF, sKV, sWB, sT, sFLAG, sC, sTHR, sWSO = 64,65,66,67,68,69,70,71,72,73,74,75
    SRDX, SRDK, SRDV, SRDW, SRDS = 44,48,52,56,60
    O = 0; Q0 = 64; Q1 = 96; SB = 128; FR = 192; AK = 224; AV = 232
    vDK, vDV = 236, 237
    vM, vTm, vMREF, vL0, vL1, vALPHA, vA2, vB2 = 238,239,240,241,242,243,244,245
    vST = 246
    AW = 238
    vDW, vDX = 247, 248
    t0,t1,t2,t3,t4,t5 = 250,251,252,253,254,255
    NF = D+2

    add(Ins("s_cmp_ge_u32 s2, 256", 'salu'))
    add(Ins("s_cbranch_scc1 L_k1_end", 'branch'))
    add(Ins("s_load_dwordx16 s[16:31], s[0:1], 0", 'other'))
    add(Ins("s_load_dwordx4 s[32:35], s[0:1], 64", 'other'))
    add(Ins("s_load_dwordx2 s[36:37], s[0:1], 96", 'other'))
    sa(f"s_and_b32 s3, s2, 7")
    sa(f"s_lshr_b32 s4, s2, 3")
    sa(f"s_lshr_b32 s{sBLK}, s3, 2")
    sa(f"s_and_b32 s3, s3, 3")
    sa(f"s_lshl_b32 s3, s3, 2")
    sa(f"s_and_b32 s5, s4, 3")
    sa(f"s_add_u32 s{sHP}, s3, s5")
    sa(f"s_lshr_b32 s{sB}, s4, 2")
    va(f"v_lshrrev_b32 v{t0}, 6, v0", V(0), V(t0))
    va(f"v_and_b32 v0, 63, v0", V(0), V(0))
    va(f"v_readfirstlane_b32 s3, v{t0}", V(t0), S(3))
    add(Ins("s_waitcnt lgkmcnt(0)", 'wait'))
    sa(f"s_lshl_b32 s{sW1024}, s3, 10", S(3))
    sa(f"s_cmp_eq_u32 s{sBLK}, 0")
    sa(f"s_cselect_b64 s[{SRDX}:{SRDX+1}], s[16:17], s[26:27]")
    sa(f"s_cselect_b64 s[{SRDK}:{SRDK+1}], s[18:19], s[28:29]")
    sa(f"s_cselect_b64 s[{SRDV}:{SRDV+1}], s[20:21], s[30:31]")
    sa(f"s_cselect_b64 s[{SRDW}:{SRDW+1}], s[22:23], s[32:33]")
    sa(f"s_mov_b64 s[{SRDS}:{SRDS+1}], s[36:37]")
    for srd, n in ((SRDX,1966080),(SRDK,33554432),(SRDV,33554432),(SRDW,4194304),(SRDS,33554432)):
        sa(f"s_mov_b32 s{srd+2}, {n}")
        sa(f"s_mov_b32 s{srd+3}, 0x20000")
    sa(f"s_mul_i32 s{sXOFF}, s{sB}, 245760")
    sa(f"s_lshl_b32 s4, s{sB}, 5")
    sa(f"s_lshl_b32 s5, s{sHP}, 1")
    sa(f"s_add_u32 s4, s4, s5")
    sa(f"s_lshl_b32 s{sKV}, s4, 17")
    sa(f"s_lshl_b32 s{sWB}, s{sHP}, 9")
    sa(f"s_mov_b32 s{sFLAG}, 0")
    cval = math.log2(math.e)/math.sqrt(128.0)
    import struct
    f2u = lambda f: struct.unpack('<I', struct.pack('<f', f))[0]
    sa(f"s_mov_b32 s{sC}, {hex(f2u(cval))}")
    sa(f"s_mov_b32 s{sTHR}, {hex(f2u(THR))}")
    sa(f"s_lshl_b32 s4, s{sBLK}, 6")
    sa(f"s_lshl_b32 s5, s{sB}, 3")
    sa(f"s_add_u32 s4, s4, s5")
    sa(f"s_add_u32 s4, s4, s3")
    sa(f"s_lshl_b32 s4, s4, 8")
    sa(f"s_lshl_b32 s5, s{sHP}, 4")
    sa(f"s_add_u32 s4, s4, s5")
    sa(f"s_lshl_b32 s{sWSO}, s4, 10")
    va(f"v_lshrrev_b32 v{t1}, 5, v0", V(0), V(t1))
    va(f"v_lshl_add_u32 v{t2}, v{t0}, 1, v{t1}", V(t0)+V(t1), V(t2))
    va(f"v_and_b32 v{t3}, 3, v{t2}", V(t2), V(t3))
    va(f"v_lshlrev_b32 v{t3}, 2, v{t3}", V(t3), V(t3))
    va(f"v_and_b32 v{t4}, 31, v0", V(0), V(t4))
    va(f"v_xor_b32 v{t3}, v{t3}, v{t4}", V(t3)+V(t4), V(t3))
    va(f"v_lshlrev_b32 v{t3}, 4, v{t3}", V(t3), V(t3))
    va(f"v_lshl_add_u32 v{vDW}, v{t2}, 13, v{t3}", V(t2)+V(t3), V(vDW))
    va(f"v_lshl_add_u32 v{t2}, v{t0}, 5, v{t4}", V(t0)+V(t4), V(t2))
    va(f"v_lshlrev_b32 v{t3}, 4, v{t1}", V(t1), V(t3))
    va(f"v_lshl_add_u32 v{vDX}, v{t2}, 10, v{t3}", V(t2)+V(t3), V(vDX))
    va(f"v_lshrrev_b32 v{t2}, 4, v0", V(0), V(t2))
    va(f"v_lshl_add_u32 v{t3}, v{t0}, 2, v{t2}", V(t0)+V(t2), V(t3))
    va(f"v_and_b32 v{t5}, 15, v0", V(0), V(t5))
    va(f"v_xor_b32 v{vDK}, v{t3}, v{t5}", V(t3)+V(t5), V(vDK))
    va(f"v_and_b32 v{vDK}, 15, v{vDK}", V(vDK), V(vDK))
    va(f"v_lshlrev_b32 v{vDK}, 4, v{vDK}", V(vDK), V(vDK))
    va(f"v_lshl_add_u32 v{vDK}, v{t3}, 8, v{vDK}", V(t3)+V(vDK), V(vDK))
    va(f"v_lshlrev_b32 v{vDV}, 2, v{t2}", V(t2), V(vDV))
    va(f"v_xor_b32 v{vDV}, v{vDV}, v{t5}", V(vDV)+V(t5), V(vDV))
    va(f"v_lshlrev_b32 v{vDV}, 4, v{vDV}", V(vDV), V(vDV))
    va(f"v_lshl_add_u32 v{vDV}, v{t3}, 8, v{vDV}", V(t3)+V(vDV), V(vDV))

    def dma(srd, voff, sbase, goff, ldsoff, tag):
        add(salu(f"s_add_u32 m0, s{sW1024}, {ldsoff}", S(sW1024), [M0]))
        add(salu(f"s_add_u32 s{sT}, s{sbase}, {goff}", S(sbase), S(sT)))
        add(Ins(f"buffer_load_dwordx4 v{voff}, s[{srd}:{srd+3}], s{sT} offen lds", 'dma', V(voff)+S(sT)+[M0], [], tag))
    WSLOT = [6,7,8,9,4,5]
    def dmaW(c):
        sl = WSLOT[c%6]
        for h in range(2):
            dma(SRDW, vDW, sWB, (32*c+16*h)*8192, sl*16384+h*8192, ('W',c))
    def dmaK(j):
        for h in range(2):
            dma(SRDK, vDK, sKV, j*16384+h*8192, (j&3)*16384+h*8192, ('K',j))
    def dmaV(j):
        for h in range(2):
            dma(SRDV, vDV, sKV, j*16384+h*8192, (4+(j&3))*16384+h*8192, ('V',j))
    def ldx(s):
        for k in range(4):
            d = Q0 + (s&3)*16 + k*4
            add(Ins(f"buffer_load_dwordx4 {vr(d,4)}, v{vDX}, s[{SRDX}:{SRDX+3}], s{sXOFF} offen offset:{(4*s+k)*32}",
                    'vmem_ld', V(vDX)+S(sXOFF), V(d,4)))
    dmaW(0); dmaW(1); ldx(0); dmaW(2); dmaW(3); ldx(1); dmaW(4); dmaW(5); ldx(2)
    for j in range(4): dmaK(j)

    va(f"v_bfe_u32 v{t2}, v0, 2, 2", V(0), V(t2))
    va(f"v_bfe_u32 v{t3}, v0, 4, 1", V(0), V(t3))
    va(f"v_and_b32 v{t5}, 1, v0", V(0), V(t5))
    va(f"v_lshl_add_u32 v{t3}, v{t3}, 1, v{t5}", V(t3)+V(t5), V(t3))
    va(f"v_lshlrev_b32 v{t3}, 4, v{t3}", V(t3), V(t3))
    va(f"v_bfe_u32 v{t5}, v0, 1, 1", V(0), V(t5))
    va(f"v_lshl_add_u32 v{t3}, v{t5}, 3, v{t3}", V(t3)+V(t5), V(t3))
    va(f"v_lshl_add_u32 v{t5}, v{t1}, 2, v{t2}", V(t1)+V(t2), V(t5))
    va(f"v_lshl_add_u32 v{t5}, v{t5}, 8, v{t3}", V(t5)+V(t3), V(t5))
    va(f"v_add_u32 v{t5}, 0x10000, v{t5}", V(t5), V(t5))
    for t in range(4):
        va(f"v_xor_b32 v{AV+t}, {t}, v{t2}", V(t2), V(AV+t))
        va(f"v_lshl_add_u32 v{AV+t}, v{AV+t}, 6, v{t5}", V(AV+t)+V(t5), V(AV+t))
    va(f"v_lshl_add_u32 v{t5}, v{t1}, 3, v{t2}", V(t1)+V(t2), V(t5))
    va(f"v_lshl_add_u32 v{t5}, v{t5}, 9, v{t3}", V(t5)+V(t3), V(t5))
    va(f"v_add_u32 v{t5}, 0x10000, v{t5}", V(t5), V(t5))
    for t in range(4):
        va(f"v_xor_b32 v{AW+t}, {t}, v{t2}", V(t2), V(AW+t))
        va(f"v_lshl_add_u32 v{AW+t}, v{AW+t}, 6, v{t5}", V(AW+t)+V(t5), V(AW+t))
        va(f"v_add_u32 v{AW+4+t}, 0x10000, v{AW+t}", V(AW+t), V(AW+4+t))
    va(f"v_and_b32 v{t5}, 15, v{t4}", V(t4), V(t5))
    va(f"v_xor_b32 v{t5}, v{t5}, v{t1}", V(t5)+V(t1), V(t5))
    va(f"v_lshlrev_b32 v{t5}, 4, v{t5}", V(t5), V(t5))
    va(f"v_lshl_add_u32 v{t5}, v{t4}, 8, v{t5}", V(t4)+V(t5), V(t5))
    for ks in range(8):
        va(f"v_xor_b32 v{AK+ks}, {ks<<5}, v{t5}", V(t5), V(AK+ks))
    va(f"v_lshlrev_b32 v{vST}, 4, v0", V(0), V(vST))

    ops = []
    def QACC(t): return (SB + 16*t) if t < 4 else (O + 16*(t-4))
    bp = {}
    ool = []
    for s in range(8):
        for sp in range(4):
            c = 2*s + (sp>>1); sl = WSLOT[c%6]
            order = range(8)
            for t in order:
                areg = AW + (t&3) + (4 if sl>=8 else 0)
                off = ((sl-4) if sl<8 else (sl-8))*16384 + (sp&1)*8192 + (t>>2)*256
                xb = Q0 + (s&3)*16 + sp*4
                first = (s==0 and sp==0)
                ops.append(dict(step=('p1',s),
                    reads=(lambda f, areg=areg, off=off: [ds_read_tr(f, areg, off), ds_read_tr(f+2, areg, off+2048)]),
                    m=(lambda f, t=t, xb=xb, first=first: mfma(QACC(t), f, xb, None if first else QACC(t))),
                    valu=[]))
        def bpf(s=s):
            tags = [('W',2*s+2),('W',2*s+3)] if s<7 else [('K',0)]
            add(Ins("", 'waittag', meta=(tags, True)))
            add(Ins("s_barrier", 'barrier'))
            if 2*s+6 <= 15: dmaW(2*s+6); dmaW(2*s+7)
            if s==5: dmaV(0); dmaV(1)
            if s==6: dmaV(2); dmaV(3)
            if s+3 <= 7: ldx(s+3)
        bp[('p1',s)] = bpf
    def pack(dst, acc):
        r=[]
        for tt in range(4):
            for h in range(2):
                for j in range(4):
                    a = acc+16*tt+8*h+2*j; d = dst + (2*tt+h)*4 + j
                    r.append(valu(f"v_cvt_pk_bf16_f32 v{d}, v{a}, v{a+1}", V(a,2), V(d)))
        return r
    packQ0 = pack(Q0, SB)
    packQ1 = pack(Q1, O)
    def softmax(j):
        sb = SB + 32*(j&1)
        r=[]
        A=[sb+i for i in range(16)]; B=[sb+16+i for i in range(16)]
        r.append(valu(f"v_max3_f32 v{vA2}, v{A[0]}, v{A[1]}, v{A[2]}", V(A[0],3), V(vA2)))
        for k in range(3,15,2):
            r.append(valu(f"v_max3_f32 v{vA2}, v{vA2}, v{A[k]}, v{A[k+1]}", V(vA2)+V(A[k],2), V(vA2)))
        r.append(valu(f"v_max3_f32 v{vB2}, v{B[0]}, v{B[1]}, v{B[2]}", V(B[0],3), V(vB2)))
        for k in range(3,15,2):
            r.append(valu(f"v_max3_f32 v{vB2}, v{vB2}, v{B[k]}, v{B[k+1]}", V(vB2)+V(B[k],2), V(vB2)))
        r.append(valu(f"v_max3_f32 v{vM}, v{vA2}, v{A[15]}, v{B[15]}", V(vA2)+V(A[15])+V(B[15]), V(vM)))
        r.append(valu(f"v_max_f32 v{vM}, v{vM}, v{vB2}", V(vM)+V(vB2), V(vM)))
        r.append(valu(f"v_mov_b32 v{vTm}, v{vM}", V(vM), V(vTm)))
        r.append(valu(f"v_permlane32_swap_b32 v{vM}, v{vTm}", V(vM)+V(vTm), V(vM)+V(vTm), 'perm'))
        r.append(valu(f"v_max_f32 v{vM}, v{vM}, v{vTm}", V(vM)+V(vTm), V(vM)))
        if j%8==0:
            r.append(valu(f"v_mul_f32 v{vMREF}, s{sC}, v{vM}", V(vM), V(vMREF)))
            r.append(valu(f"v_mov_b32 v{vL0}, 0", [], V(vL0)))
            r.append(valu(f"v_mov_b32 v{vL1}, 0", [], V(vL1)))
        else:
            r.append(valu(f"v_fma_f32 v{vTm}, v{vM}, s{sC}, -v{vMREF}", V(vM)+V(vMREF), V(vTm)))
            r.append(valu(f"v_cmp_lt_f32 vcc, s{sTHR}, v{vTm}", V(vTm), [('s','vcc')]))
            r.append(Ins(f"s_cbranch_vccnz L_rare1_{j}", 'branch'))
            r.append(Ins(f"L_back1_{j}:", 'label'))
            ool.append([f"L_rare1_{j}:",
                f"    s_nop 4",
                f"    v_mul_f32 v{vTm}, s{sC}, v{vM}",
                f"    v_max_f32 v{vTm}, v{vTm}, v{vMREF}",
                f"    v_sub_f32 v{vALPHA}, v{vMREF}, v{vTm}",
                f"    v_exp_f32 v{vALPHA}, v{vALPHA}",
                f"    v_mov_b32 v{vMREF}, v{vTm}",
                f"    s_nop 1",
                f"    v_mul_f32 v{vL0}, v{vL0}, v{vALPHA}",
                f"    v_mul_f32 v{vL1}, v{vL1}, v{vALPHA}",
                f"    s_mov_b32 s{sFLAG}, 1",
                f"    s_nop 4",
                f"    s_branch L_back1_{j}"])
        for h in range(4):
            base = sb+8*h
            for i in range(8):
                x=base+i
                r.append(valu(f"v_fma_f32 v{x}, v{x}, s{sC}, -v{vMREF}", V(x)+V(vMREF), V(x)))
            for i in range(8):
                x=base+i
                r.append(valu(f"v_exp_f32 v{x}, v{x}", V(x), V(x), 'trans'))
            for i in range(8):
                x=base+i; L = vL0 if i%2==0 else vL1
                r.append(valu(f"v_add_f32 v{L}, v{L}, v{x}", V(L)+V(x), V(L)))
            for jj in range(4):
                r.append(valu(f"v_cvt_pk_bf16_f32 v{base+jj}, v{base+2*jj}, v{base+2*jj+1}", V(base+2*jj,2), V(base+jj)))
        return r
    def rescale_check(j):
        ool.append([f"L_rare2_{j}:", "    s_nop 15", "    s_nop 7"] +
                   [f"    v_mul_f32 v{O+i}, v{O+i}, v{vALPHA}" for i in range(64)] +
                   [f"    s_mov_b32 s{sFLAG}, 0", "    s_nop 7", f"    s_branch L_back2_{j}"])
        return [Ins(f"s_cmp_lg_u32 s{sFLAG}, 0", 'salu'), Ins(f"s_cbranch_scc1 L_rare2_{j}", 'branch'), Ins(f"L_back2_{j}:", 'label')]
    vRINV = 249; sST = 76
    def finalize_l():
        r=[]
        r.append(valu(f"v_add_f32 v{t0}, v{vL0}, v{vL1}", V(vL0)+V(vL1), V(t0)))
        r.append(valu(f"v_mov_b32 v{t1}, v{t0}", V(t0), V(t1)))
        r.append(valu(f"v_permlane32_swap_b32 v{t0}, v{t1}", V(t0)+V(t1), V(t0)+V(t1), 'perm'))
        r.append(valu(f"v_add_f32 v{t0}, v{t0}, v{t1}", V(t0)+V(t1), V(t0)))
        r.append(valu(f"v_rcp_f32 v{vRINV}, v{t0}", V(t0), V(vRINV), 'trans'))
        return r
    def finalize_head(hh):
        r=[]
        r.append(salu(f"s_add_u32 s{sST}, s{sWSO}, {hh*8192}", S(sWSO), S(sST)))
        for t in range(4):
            for h in range(2):
                base=O+16*t+8*h
                for i in range(8):
                    r.append(valu(f"v_mul_f32 v{base+i}, v{base+i}, v{vRINV}", V(base+i)+V(vRINV), V(base+i)))
                for jj in range(4):
                    r.append(valu(f"v_cvt_pk_bf16_f32 v{base+jj}, v{base+2*jj}, v{base+2*jj+1}", V(base+2*jj,2), V(base+jj)))
                r.append(Ins(f"buffer_store_dwordx4 {vr(base,4)}, v{vST}, s[{SRDS}:{SRDS+3}], s{sST} offen offset:{(2*t+h)*1024 if (2*t+h)<4 else (2*t+h-4)*1024}",
                             'vmem_st', V(base,4)+V(vST)+S(sST), []))
                if 2*t+h==3:
                    r.append(salu(f"s_add_u32 s{sST}, s{sWSO}, {hh*8192+4096}", S(sWSO), S(sST)))
        return r
    for j in range(-1, 17):
        st = ('p2', j)
        n0 = len(ops)
        if 0 <= j-1 <= 15:
            jj=j-1; pb = SB + 32*(jj&1)
            for p in range(4):
                for t in range(4):
                    off = (jj&3)*16384 + p*4096
                    first = (jj%8==0 and p==0)
                    ops.append(dict(step=st,
                        reads=(lambda f, t=t, off=off: [ds_read_tr(f, AV+t, off), ds_read_tr(f+2, AV+t, off+2048)]),
                        m=(lambda f, t=t, p=p, pb=pb, first=first: mfma(O+16*t, f, pb+8*p, None if first else O+16*t)),
                        valu=[]))
        n1 = len(ops)
        if j+1 <= 15:
            jj=j+1; sb = SB+32*(jj&1); Q = Q0 if jj<8 else Q1
            for kt in range(2):
                for ks in range(8):
                    off = (jj&3)*16384 + kt*8192
                    ops.append(dict(step=st,
                        reads=(lambda f, ks=ks, off=off: [ds_read_b128(f, AK+ks, off)]),
                        m=(lambda f, kt=kt, ks=ks, sb=sb, Q=Q: mfma(sb+16*kt, f, Q+4*ks, None if ks==0 else sb+16*kt)),
                        valu=[]))
        n2 = len(ops)
        vl = softmax(j) if 0<=j<=15 else []
        if j%8==7: vl = vl + finalize_l()
        nops = n2-n0
        if j==-1:
            vl = packQ1
        if vl:
            per = (len(vl)+nops-1)//nops
            k=0
            for i in range(n0,n2):
                ops[i]['valu'] += vl[k:k+per]; k+=per
        if 1<=j<=15 and j%8!=0:
            if n1<n2: ops[n1]['valu'] = rescale_check(j) + ops[n1]['valu']
            else: ops[n1-1]['post'] = rescale_check(j)
        if j in (8,16):
            fin = finalize_head(0 if j==8 else 1)
            if j==8:
                per=(len(fin)+(n2-n1)-1)//(n2-n1); k=0
                for i in range(n1,n2):
                    ops[i]['valu'] += fin[k:k+per]; k+=per
            else:
                ops[n2-1]['post'] = fin
        def bpf(j=j):
            tags=[]
            if 0<=j<=15: tags.append(('V',j))
            if j+2<=15: tags.append(('K',j+2))
            add(Ins("", 'waittag', meta=(tags, True)))
            add(Ins("s_barrier", 'barrier'))
            if j+5<=15: dmaK(j+5)
            if 4<=j+3<=15: dmaV(j+3)
        bp[st]=bpf
    p1end = 8*32
    k=0
    for i in range(p1end-3, p1end+1):
        ops[i]['valu'] = packQ0[k:k+8] + ops[i]['valu']; k+=8

    N=len(ops)
    add(Ins("", 'waittag', meta=([('W',0),('W',1)], False)))
    add(Ins("s_barrier", 'barrier'))
    def fr(i): return FR + 4*(i%NF)
    for i in range(D):
        for r in ops[i]['reads'](fr(i)): add(r)
    for i in range(N):
        if i+D < N:
            if ops[i+D]['step'] != ops[i+D-1]['step']:
                bp[ops[i+D-1]['step']]()
            for r in ops[i+D]['reads'](fr(i+D)): add(r)
        for v in ops[i]['valu']: add(v)
        add(ops[i]['m'](fr(i)))
        for v in ops[i].get('post', []): add(v)
    body = render(finalize(P))
    txt = body + "L_k1_end:\n    s_endpgm\n" + "\n".join("\n".join(b) for b in ool) + "\n"
    return txt

HEAD = open("cdna_kernels/"+NAME+".s.ref").read().split("; Override launch")[0]

def kd(name, vgpr, sgpr=102):
    return f""".amdhsa_kernel {name}
  .amdhsa_next_free_vgpr {vgpr}
  .amdhsa_next_free_sgpr {sgpr}
  .amdhsa_accum_offset {vgpr}
  .amdhsa_group_segment_fixed_size 0
  .amdhsa_kernarg_size 104
  .amdhsa_user_sgpr_count 2
  .amdhsa_user_sgpr_kernarg_segment_ptr 1
  .amdhsa_system_sgpr_workgroup_id_x 1
.end_amdhsa_kernel
"""

def build(k2=None):
    s = HEAD
    s += "; @launch kernel=attn_kernel grid=(256,1,1) block=(512,1,1) lds=163840\n"
    if k2: s += "; @launch kernel=oproj_kernel grid=(256,1,1) block=(512,1,1) lds=%d\n" % k2[1]
    s += '.amdgcn_target "amdgcn-amd-amdhsa--gfx950"\n.text\n'
    s += ".globl attn_kernel\n.p2align 8\n.type attn_kernel,@function\nattn_kernel:\n" + gen_k1()
    if k2:
        s += ".globl oproj_kernel\n.p2align 8\n.type oproj_kernel,@function\noproj_kernel:\n" + k2[0]
    s += '.section .rodata,"a"\n.p2align 6\n' + kd("attn_kernel", 256)
    if k2: s += ".p2align 6\n" + kd("oproj_kernel", k2[2])
    return s

if __name__ == "__main__":
    out = sys.argv[1] if len(sys.argv)>1 else "k.s"
    try:
        from gen2 import gen_k2
        k2 = gen_k2()
    except ImportError:
        k2 = None
    open(out,"w").write(build(k2))
    print("wrote", out)
```

```python
import sys, math, os, struct
sys.path.insert(0, "dev")
from asmlib import *

NAME = "concat_heads__mha_block_cached__gqa_block_cached__near_ridge"
M0 = ('s','m0')
f2u = lambda f: struct.unpack('<I', struct.pack('<f', f))[0]

class Cfg:
    STAMP=False; KVPOL='sc1 nt'; WPOL=''; D=6; THR=8.0; ABL=''; STPOL=''; PRIO=0; RPOL=''
cfg=Cfg()

def gen_k1():
    D=cfg.D; NF=D+2
    P=[]; add=P.append
    def sa(t, rd=(), wr=()): add(salu(t, rd, wr))
    def va(t, rd=(), wr=(), kind='valu'): add(valu(t, rd, wr, kind))
    stamp_idx=[0]
    def bar(tags):
        if cfg.STAMP: add(Ins("s_memtime s[80:81]", 'other')); add(Ins("s_memrealtime s[94:95]", 'other'))
        add(Ins("", 'waittag', meta=(tags, True)))
        if cfg.STAMP:
            i=stamp_idx[0]
            if i>0: add(Ins(f"v_writelane_b32 v253, s94, {i}", 'valu', [], V(253)))
            add(Ins(f"v_writelane_b32 v255, s80, {i}", 'valu', [], V(255)))
            if i>0: add(Ins(f"v_writelane_b32 v254, s82, {i-1}", 'valu', [], V(254)))
            stamp_idx[0]+=1
        if 'B' not in cfg.ABL: add(Ins("s_barrier", 'barrier'))
        if cfg.STAMP: add(Ins("s_memtime s[82:83]", 'other'))
    sBLK,sB,sHP,sW1024,sXOFF,sKV,sWB,sT,sFLAG,sC,sTHR,sWSO,sST,sWOB = range(64,78)
    SRDX,SRDK,SRDV,SRDW,SRDS,SRDO = 44,48,52,56,60,88
    O=0; Q0=64; Q1=96; SB=128; FR=192; AK=224; AV=232
    vDK,vDV=236,237
    vM,vTm,vMREF,vL0,vL1,vALPHA,vA2,vB2 = range(238,246)
    AW=238
    vST,vDW,vDX,vRINV = 246,247,248,249
    vDO = vDW
    t0,t1,t2,t3,t4,t5 = range(250,256)
    if cfg.STAMP: A3C=[196+NF*4-4]*4
    assert FR+4*NF <= AK

    add(Ins("s_cmp_ge_u32 s2, 256", 'salu'))
    add(Ins("s_cbranch_scc1 L_k1_end", 'branch'))
    if cfg.STAMP: add(Ins("s_memtime s[84:85]", 'other')); add(Ins("s_memrealtime s[86:87]", 'other'))
    add(Ins("s_load_dwordx16 s[16:31], s[0:1], 0", 'other'))
    add(Ins("s_load_dwordx4 s[32:35], s[0:1], 64", 'other'))
    add(Ins("s_load_dwordx2 s[36:37], s[0:1], 96", 'other'))
    sa("s_and_b32 s3, s2, 7"); sa("s_lshr_b32 s4, s2, 3"); sa(f"s_lshr_b32 s{sBLK}, s3, 2")
    sa("s_and_b32 s3, s3, 3"); sa("s_lshl_b32 s3, s3, 2"); sa("s_and_b32 s5, s4, 3")
    sa(f"s_add_u32 s{sHP}, s3, s5"); sa(f"s_lshr_b32 s{sB}, s4, 2")
    va(f"v_lshrrev_b32 v{t0}, 6, v0", V(0), V(t0))
    va(f"v_and_b32 v0, 63, v0", V(0), V(0))
    va(f"v_readfirstlane_b32 s3, v{t0}", V(t0), S(3))
    va(f"v_lshrrev_b32 v{t1}, 5, v0", V(0), V(t1))
    va(f"v_lshl_add_u32 v{t2}, v{t0}, 1, v{t1}", V(t0)+V(t1), V(t2))
    va(f"v_and_b32 v{t3}, 3, v{t2}", V(t2), V(t3))
    va(f"v_lshlrev_b32 v{t3}, 2, v{t3}", V(t3), V(t3))
    va(f"v_and_b32 v{t4}, 31, v0", V(0), V(t4))
    va(f"v_xor_b32 v{t3}, v{t3}, v{t4}", V(t3)+V(t4), V(t3))
    va(f"v_lshlrev_b32 v{t3}, 4, v{t3}", V(t3), V(t3))
    va(f"v_lshl_add_u32 v{vDW}, v{t2}, 13, v{t3}", V(t2)+V(t3), V(vDW))
    va(f"v_lshl_add_u32 v{t2}, v{t0}, 5, v{t4}", V(t0)+V(t4), V(t2))
    va(f"v_lshlrev_b32 v{t3}, 4, v{t1}", V(t1), V(t3))
    va(f"v_lshl_add_u32 v{vDX}, v{t2}, 10, v{t3}", V(t2)+V(t3), V(vDX))
    sa(f"s_lshl_b32 s{sW1024}, s3, 10", S(3))
    sa(f"s_mul_i32 s{sXOFF}, s{sB}, 245760")
    sa(f"s_lshl_b32 s{sWB}, s{sHP}, 9")
    add(Ins("s_waitcnt lgkmcnt(0)", 'wait'))
    sa(f"s_cmp_eq_u32 s{sBLK}, 0")
    sa(f"s_cselect_b64 s[{SRDW}:{SRDW+1}], s[22:23], s[32:33]")
    sa(f"s_cselect_b64 s[{SRDX}:{SRDX+1}], s[16:17], s[26:27]")
    sa(f"s_cselect_b64 s[{SRDK}:{SRDK+1}], s[18:19], s[28:29]")
    sa(f"s_cselect_b64 s[{SRDV}:{SRDV+1}], s[20:21], s[30:31]")
    sa(f"s_cselect_b64 s[{SRDO}:{SRDO+1}], s[24:25], s[34:35]")
    sa(f"s_mov_b64 s[{SRDS}:{SRDS+1}], s[36:37]")
    for srd,n in ((SRDW,4194304),(SRDX,1966080),(SRDK,33554432),(SRDV,33554432),(SRDS,67108864),(SRDO,4194304)):
        sa(f"s_mov_b32 s{srd+2}, {n}"); sa(f"s_mov_b32 s{srd+3}, 0x20000")

    def dma(srd, voff, sbase, goff, ldsoff, tag):
        if 'D' in cfg.ABL and tag not in (('W',0),('W',1)): return
        pol = cfg.KVPOL if tag[0] in 'KV' else cfg.WPOL
        add(salu(f"s_add_u32 m0, s{sW1024}, {ldsoff}", S(sW1024), [M0]))
        add(salu(f"s_add_u32 s{sT}, s{sbase}, {goff}", S(sbase), S(sT)))
        add(Ins(f"buffer_load_dwordx4 v{voff}, s[{srd}:{srd+3}], s{sT} offen {pol} lds", 'dma', V(voff)+S(sT)+[M0], [], tag))
    WSLOT=[6,7,8,9,4,5]
    OSLOT=[8,9,0,1,2,3,4,5,6,7]
    def dmaW(c):
        for h in range(2): dma(SRDW, vDW, sWB, (32*c+16*h)*8192, WSLOT[c%6]*16384+h*8192, ('W',c))
    def dmaK(j):
        for h in range(2): dma(SRDK, vDK, sKV, j*16384+h*8192, (j&3)*16384+h*8192, ('K',j))
    def dmaV(j):
        for h in range(2): dma(SRDV, vDV, sKV, j*16384+h*8192, (4+(j&3))*16384+h*8192, ('V',j))
    def dmaO(i):
        c=i>>2; kt=i&3
        for h in range(2): dma(SRDO, vDO, sWOB, (64*kt+32*h)*1024+c*256, OSLOT[i%10]*16384+h*8192, ('O',i))
    def ldx(s):
        for k in range(4):
            d=Q0+(s&3)*16+k*4
            add(Ins(f"buffer_load_dwordx4 {vr(d,4)}, v{vDX}, s[{SRDX}:{SRDX+3}], s{sXOFF} offen offset:{(4*s+k)*32}",
                    'vmem_ld', V(vDX)+S(sXOFF), V(d,4)))
    dmaW(0); dmaW(1); ldx(0); dmaW(2); dmaW(3); ldx(1); dmaW(4); dmaW(5); ldx(2)
    sa(f"s_lshl_b32 s4, s{sB}, 5"); sa(f"s_lshl_b32 s5, s{sHP}, 1"); sa("s_add_u32 s4, s4, s5")
    sa(f"s_lshl_b32 s{sKV}, s4, 17")
    sa(f"s_mov_b32 s{sFLAG}, 0")
    sa(f"s_mov_b32 s{sC}, {hex(f2u(math.log2(math.e)/math.sqrt(128.0)))}")
    sa(f"s_mov_b32 s{sTHR}, {hex(f2u(cfg.THR))}")
    sa(f"s_lshl_b32 s4, s{sBLK}, 3"); sa(f"s_add_u32 s4, s4, s{sB}"); sa("s_lshl_b32 s4, s4, 4")
    sa(f"s_add_u32 s4, s4, s{sHP}"); sa("s_lshl_b32 s4, s4, 3"); sa("s_add_u32 s4, s4, s3")
    sa(f"s_lshl_b32 s{sWSO}, s4, 15")
    sa(f"s_lshl_b32 s{sWOB}, s{sHP}, 18")
    va(f"v_lshrrev_b32 v{t2}, 4, v0", V(0), V(t2))
    va(f"v_lshl_add_u32 v{t3}, v{t0}, 2, v{t2}", V(t0)+V(t2), V(t3))
    va(f"v_and_b32 v{t5}, 15, v0", V(0), V(t5))
    va(f"v_xor_b32 v{vDK}, v{t3}, v{t5}", V(t3)+V(t5), V(vDK))
    va(f"v_and_b32 v{vDK}, 15, v{vDK}", V(vDK), V(vDK))
    va(f"v_lshlrev_b32 v{vDK}, 4, v{vDK}", V(vDK), V(vDK))
    va(f"v_lshl_add_u32 v{vDK}, v{t3}, 8, v{vDK}", V(t3)+V(vDK), V(vDK))
    va(f"v_lshlrev_b32 v{vDV}, 2, v{t2}", V(t2), V(vDV))
    va(f"v_xor_b32 v{vDV}, v{vDV}, v{t5}", V(vDV)+V(t5), V(vDV))
    va(f"v_lshlrev_b32 v{vDV}, 4, v{vDV}", V(vDV), V(vDV))
    va(f"v_lshl_add_u32 v{vRINV}, v{t3}, 10, v{vDV}", V(t3)+V(vDV), V(vRINV))
    va(f"v_lshl_add_u32 v{vDV}, v{t3}, 8, v{vDV}", V(t3)+V(vDV), V(vDV))
    va(f"v_bfe_u32 v{t2}, v0, 2, 2", V(0), V(t2))
    va(f"v_bfe_u32 v{t3}, v0, 4, 1", V(0), V(t3))
    va(f"v_and_b32 v{t5}, 1, v0", V(0), V(t5))
    va(f"v_lshl_add_u32 v{t3}, v{t3}, 1, v{t5}", V(t3)+V(t5), V(t3))
    va(f"v_lshlrev_b32 v{t3}, 4, v{t3}", V(t3), V(t3))
    va(f"v_bfe_u32 v{t5}, v0, 1, 1", V(0), V(t5))
    va(f"v_lshl_add_u32 v{t3}, v{t5}, 3, v{t3}", V(t3)+V(t5), V(t3))
    va(f"v_lshl_add_u32 v{t5}, v{t1}, 2, v{t2}", V(t1)+V(t2), V(t5))
    va(f"v_lshl_add_u32 v{t5}, v{t5}, 8, v{t3}", V(t5)+V(t3), V(t5))
    va(f"v_add_u32 v{t5}, 0x10000, v{t5}", V(t5), V(t5))
    for t in range(4):
        va(f"v_xor_b32 v{AV+t}, {t}, v{t2}", V(t2), V(AV+t))
        va(f"v_lshl_add_u32 v{AV+t}, v{AV+t}, 6, v{t5}", V(AV+t)+V(t5), V(AV+t))
    va(f"v_lshl_add_u32 v{t5}, v{t1}, 3, v{t2}", V(t1)+V(t2), V(t5))
    va(f"v_lshl_add_u32 v{t5}, v{t5}, 9, v{t3}", V(t5)+V(t3), V(t5))
    va(f"v_add_u32 v{t5}, 0x10000, v{t5}", V(t5), V(t5))
    for t in range(4):
        va(f"v_xor_b32 v{AW+t}, {t}, v{t2}", V(t2), V(AW+t))
        va(f"v_lshl_add_u32 v{AW+t}, v{AW+t}, 6, v{t5}", V(AW+t)+V(t5), V(AW+t))
        va(f"v_add_u32 v{AW+4+t}, 0x10000, v{AW+t}", V(AW+t), V(AW+4+t))
    va(f"v_and_b32 v{t5}, 15, v{t4}", V(t4), V(t5))
    va(f"v_xor_b32 v{t5}, v{t5}, v{t1}", V(t5)+V(t1), V(t5))
    va(f"v_lshlrev_b32 v{t5}, 4, v{t5}", V(t5), V(t5))
    va(f"v_lshl_add_u32 v{t5}, v{t4}, 8, v{t5}", V(t4)+V(t5), V(t5))
    for ks in range(8):
        va(f"v_xor_b32 v{AK+ks}, {ks<<5}, v{t5}", V(t5), V(AK+ks))
    va(f"v_lshlrev_b32 v{vST}, 4, v0", V(0), V(vST))
    if cfg.PRIO:
        sa(f"s_cmp_lt_u32 s3, 4"); add(Ins("s_cbranch_scc1 L_noprio",'branch')); add(Ins(f"s_setprio {cfg.PRIO}",'other')); add(Ins("L_noprio:",'label'))

    ops=[]; bp={}; ool=[]
    def QACC(t): return (SB+16*t) if t<4 else (O+16*(t-4))
    for s in range(8):
        for sp in range(4):
            c=2*s+(sp>>1); sl=WSLOT[c%6]
            for t in range(8):
                areg=AW+(t&3)+(4 if sl>=8 else 0)
                off=((sl-4) if sl<8 else (sl-8))*16384+(sp&1)*8192+(t>>2)*256
                xb=Q0+(s&3)*16+sp*4; first=(s==0 and sp==0)
                ops.append(dict(step=('p1',s),
                    reads=(lambda f,areg=areg,off=off:[ds_read_tr(f,areg,off),ds_read_tr(f+2,areg,off+2048)]),
                    m=(lambda f,t=t,xb=xb,first=first: mfma(QACC(t),f,xb,None if first else QACC(t))), valu=[]))
        def bpf(s=s):
            bar([('W',2*s+2),('W',2*s+3)] if s<7 else [('K',0)])
            if 2*s+6<=15: dmaW(2*s+6); dmaW(2*s+7)
            if s+3<=7: ldx(s+3)
            if s<4: dmaK(s)
            if s==5: dmaV(0); dmaV(1)
            if s==6: dmaV(2); dmaV(3)
            if s==7: va(f"v_mov_b32 v{vDO}, v{vRINV}", V(vRINV), V(vDO))
        bp[('p1',s)]=bpf
    def pack(dst, acc, scale=None):
        r=[]
        for tt in range(4):
            for h in range(2):
                b0=acc+16*tt+8*h
                if scale is not None:
                    for i in range(8):
                        r.append(valu(f"v_mul_f32 v{b0+i}, v{b0+i}, v{scale}", V(b0+i)+V(scale), V(b0+i)))
                for j in range(4):
                    a=b0+2*j; d=dst+(2*tt+h)*4+j
                    r.append(valu(f"v_cvt_pk_bf16_f32 v{d}, v{a}, v{a+1}", V(a,2), V(d)))
        return r
    def softmax(j):
        sb=SB+32*(j&1); r=[]
        A=[sb+i for i in range(16)]; B=[sb+16+i for i in range(16)]
        r.append(valu(f"v_max3_f32 v{vA2}, v{A[0]}, v{A[1]}, v{A[2]}", V(A[0],3), V(vA2)))
        for k in range(3,15,2): r.append(valu(f"v_max3_f32 v{vA2}, v{vA2}, v{A[k]}, v{A[k+1]}", V(vA2)+V(A[k],2), V(vA2)))
        r.append(valu(f"v_max3_f32 v{vB2}, v{B[0]}, v{B[1]}, v{B[2]}", V(B[0],3), V(vB2)))
        for k in range(3,15,2): r.append(valu(f"v_max3_f32 v{vB2}, v{vB2}, v{B[k]}, v{B[k+1]}", V(vB2)+V(B[k],2), V(vB2)))
        r.append(valu(f"v_max3_f32 v{vM}, v{vA2}, v{A[15]}, v{B[15]}", V(vA2)+V(A[15])+V(B[15]), V(vM)))
        r.append(valu(f"v_max_f32 v{vM}, v{vM}, v{vB2}", V(vM)+V(vB2), V(vM)))
        r.append(valu(f"v_mov_b32 v{vTm}, v{vM}", V(vM), V(vTm)))
        r.append(valu(f"v_permlane32_swap_b32 v{vM}, v{vTm}", V(vM)+V(vTm), V(vM)+V(vTm), 'perm'))
        r.append(valu(f"v_max_f32 v{vM}, v{vM}, v{vTm}", V(vM)+V(vTm), V(vM)))
        if j%8==0:
            r.append(valu(f"v_mul_f32 v{vMREF}, s{sC}, v{vM}", V(vM), V(vMREF)))
            r.append(valu(f"v_mov_b32 v{vL0}, 0", [], V(vL0)))
            r.append(valu(f"v_mov_b32 v{vL1}, 0", [], V(vL1)))
        else:
            r.append(valu(f"v_fma_f32 v{vTm}, v{vM}, s{sC}, -v{vMREF}", V(vM)+V(vMREF), V(vTm)))
            r.append(valu(f"v_cmp_lt_f32 vcc, s{sTHR}, v{vTm}", V(vTm), [('s','vcc')]))
            r.append(Ins(f"s_cbranch_vccnz L_rare1_{j}", 'branch'))
            r.append(Ins(f"L_back1_{j}:", 'label'))
            ool.append([f"L_rare1_{j}:", "    s_nop 4",
                f"    v_mul_f32 v{vTm}, s{sC}, v{vM}", f"    v_max_f32 v{vTm}, v{vTm}, v{vMREF}",
                f"    v_sub_f32 v{vALPHA}, v{vMREF}, v{vTm}", f"    v_exp_f32 v{vALPHA}, v{vALPHA}",
                f"    v_mov_b32 v{vMREF}, v{vTm}", "    s_nop 1",
                f"    v_mul_f32 v{vL0}, v{vL0}, v{vALPHA}", f"    v_mul_f32 v{vL1}, v{vL1}, v{vALPHA}",
                f"    s_mov_b32 s{sFLAG}, 1", "    s_nop 4", f"    s_branch L_back1_{j}"])
        for h in range(4):
            base=sb+8*h
            for i in range(8):
                x=base+i; r.append(valu(f"v_fma_f32 v{x}, v{x}, s{sC}, -v{vMREF}", V(x)+V(vMREF), V(x)))
            for i in range(8):
                x=base+i; r.append(valu(f"v_exp_f32 v{x}, v{x}", V(x), V(x), 'trans'))
            for i in range(8):
                x=base+i; L=vL0 if i%2==0 else vL1
                r.append(valu(f"v_add_f32 v{L}, v{L}, v{x}", V(L)+V(x), V(L)))
            for jj in range(4):
                r.append(valu(f"v_cvt_pk_bf16_f32 v{base+jj}, v{base+2*jj}, v{base+2*jj+1}", V(base+2*jj,2), V(base+jj)))
        if 'V' in cfg.ABL: r=[x for x in r if x.kind in ('branch','label')]
        return r
    def rescale_check(j):
        ool.append([f"L_rare2_{j}:", "    s_nop 15", "    s_nop 7"]+
                   [f"    v_mul_f32 v{O+i}, v{O+i}, v{vALPHA}" for i in range(64)]+
                   [f"    s_mov_b32 s{sFLAG}, 0", "    s_nop 7", f"    s_branch L_back2_{j}"])
        return [Ins(f"s_cmp_lg_u32 s{sFLAG}, 0",'salu'), Ins(f"s_cbranch_scc1 L_rare2_{j}",'branch'), Ins(f"L_back2_{j}:",'label')]
    def finalize_l():
        return [valu(f"v_add_f32 v{t0}, v{vL0}, v{vL1}", V(vL0)+V(vL1), V(t0)),
                valu(f"v_mov_b32 v{t1}, v{t0}", V(t0), V(t1)),
                valu(f"v_permlane32_swap_b32 v{t0}, v{t1}", V(t0)+V(t1), V(t0)+V(t1), 'perm'),
                valu(f"v_add_f32 v{t0}, v{t0}, v{t1}", V(t0)+V(t1), V(t0)),
                valu(f"v_rcp_f32 v{vRINV}, v{t0}", V(t0), V(vRINV), 'trans')]
    def spread(vl, a, b, front=False):
        n=b-a; per=(len(vl)+n-1)//n; k=0
        for i in range(a,b):
            if front: ops[i]['valu']=vl[k:k+per]+ops[i]['valu']
            else: ops[i]['valu']+=vl[k:k+per]
            k+=per
    for j in range(-1,17):
        st=('p2',j); n0=len(ops)
        if 0<=j-1<=15:
            jj=j-1; pb=SB+32*(jj&1)
            for p in range(4):
                for t in range(4):
                    off=(jj&3)*16384+p*4096; first=(jj%8==0 and p==0)
                    ops.append(dict(step=st,
                        reads=(lambda f,t=t,off=off:[ds_read_tr(f,AV+t,off),ds_read_tr(f+2,AV+t,off+2048)]),
                        m=(lambda f,t=t,p=p,pb=pb,first=first: mfma(O+16*t,f,pb+8*p,None if first else O+16*t)), valu=[]))
        n1=len(ops)
        if j+1<=15:
            jj=j+1; sb=SB+32*(jj&1); Q=Q0 if jj<8 else Q1
            for kt in range(2):
                for ks in range(8):
                    off=(jj&3)*16384+kt*8192
                    ops.append(dict(step=st,
                        reads=(lambda f,ks=ks,off=off:[ds_read_b128(f,AK+ks,off)]),
                        m=(lambda f,kt=kt,ks=ks,sb=sb,Q=Q: mfma(sb+16*kt,f,Q+4*ks,None if ks==0 else sb+16*kt)), valu=[]))
        n2=len(ops)
        vl=softmax(j) if 0<=j<=15 else []
        if j%8==7: vl=vl+finalize_l()
        if j==-1: vl=pack(Q1,O)
        if j==15:
            extra=[valu(f"v_lshrrev_b32 v{t2}, 9, v{vST}", V(vST), V(t2)),
                   valu(f"v_lshlrev_b32 v{t2}, 10, v{t2}", V(t2), V(t2))]
            for t in range(4):
                extra.append(valu(f"v_add_u32 v{AK+4+t}, v{AV+t}, v{t2}", V(AV+t)+V(t2), V(AK+4+t)))
                extra.append(valu(f"v_subrev_u32 v{AK+t}, 0x10000, v{AK+4+t}", V(AK+4+t), V(AK+t)))
            vl=vl+extra
        if vl: spread(vl,n0,n2)
        if 1<=j<=15 and j%8!=0:
            if n1<n2: ops[n1]['valu']=rescale_check(j)+ops[n1]['valu']
            else: ops[n1-1]['post']=rescale_check(j)
        if j==8: spread(pack(Q0,O,vRINV), n1, n2)
        def bpf(j=j):
            tags=[]
            if 0<=j<=15: tags.append(('V',j))
            if j+2<=15: tags.append(('K',j+2))
            if j==16: tags+= [('O',0),('O',1)]
            bar(tags)
            if j+5<=15: dmaK(j+5)
            if 4<=j+3<=15: dmaV(j+3)
            for i,jj in ((0,8),(1,9),(2,11),(3,12),(4,13),(5,14),(6,13),(7,14),(8,15),(9,16)):
                if jj==j: dmaO(i)
        bp[st]=bpf
    spread(pack(Q0,SB), 8*32-3, 8*32+1, front=True)
    def ACC3(c): return SB if c%2==0 else O
    def store3(c):
        r=[salu(f"s_add_u32 s{sST}, s{sWSO}, {c*8192}", S(sWSO), S(sST))]
        acc=ACC3(c)
        for t in range(4):
            for h in range(2):
                base=acc+16*t+8*h; k=2*t+h
                for jj in range(4):
                    r.append(valu(f"v_cvt_pk_bf16_f32 v{base+jj}, v{base+2*jj}, v{base+2*jj+1}", V(base+2*jj,2), V(base+jj)))
                r.append(Ins(f"buffer_store_dwordx4 {vr(base,4)}, v{vST}, s[{SRDS}:{SRDS+3}], s{sST} offen offset:{(k&3)*1024} {cfg.STPOL}",
                             'vmem_st', V(base,4)+V(vST)+S(sST), []))
                if k==3: r.append(salu(f"s_add_u32 s{sST}, s{sWSO}, {c*8192+4096}", S(sWSO), S(sST)))
        return r
    p3start=len(ops)
    for q in range(8):
        st=('p3',q); n0=len(ops)
        for i in (2*q,2*q+1):
            c=i>>2; kt=i&3; sl=OSLOT[i%10]
            for p in range(4):
                for t in range(4):
                    if sl<4: areg=AK+t; off=sl*16384
                    elif sl<8: areg=AK+4+t; off=(sl-4)*16384
                    else: areg=AK+4+t; off=(sl-4)*16384
                    off+=p*4096
                    bb=(Q0+4*(4*kt+p)) if kt<2 else (Q1+4*(4*(kt-2)+p))
                    first=(kt==0 and p==0); acc=ACC3(c)+16*t
                    if sl>=8:
                        areg=('C',t); off=(sl-8)*16384+p*4096
                    ops.append(dict(step=st, areg=areg,
                        reads=(lambda f,areg=areg,off=off:[ds_read_tr(f,A3(areg),off),ds_read_tr(f+2,A3(areg),off+1024)]),
                        m=(lambda f,bb=bb,acc=acc,first=first: mfma(acc,f,bb,None if first else acc)), valu=[]))
        n2=len(ops)
        if q==0: spread(pack(Q1,O,vRINV), n0+2, n2-4)
        if q>=2 and q%2==0: spread(store3(q//2-1), n0+2, n0+20)
        def bpf(q=q):
            bar([('O',2*q+2),('O',2*q+3)])
            if 2*q+10<=15: dmaO(2*q+10); dmaO(2*q+11)
        bp[st]=bpf
    ops[-1]['post']=store3(3)
    C3=[t2,t3,t4,t5] if not cfg.STAMP else [t2,vM,vA2,vB2]
    def A3(a): return C3[a[1]] if isinstance(a,tuple) else a
    idx=[i for i,o in enumerate(ops) if o['step']==('p2',16)][0]
    for t in range(4):
        ops[idx]['valu'].append(valu(f"v_add_u32 v{C3[t]}, 0x10000, v{AK+4+t}", V(AK+4+t), V(C3[t])))

    N=len(ops)
    bar([('W',0),('W',1)])
    def fr(i): return FR+4*(i%NF)
    for i in range(D):
        for r in ops[i]['reads'](fr(i)): add(r)
    for i in range(N):
        if i+D<N:
            if ops[i+D]['step']!=ops[i+D-1]['step']: bp[ops[i+D-1]['step']]()
            for r in ops[i+D]['reads'](fr(i+D)): add(r)
        for v in ops[i]['valu']: add(v)
        add(ops[i]['m'](fr(i)))
        for v in ops[i].get('post',[]): add(v)
    if cfg.STAMP:
        add(Ins("s_memtime s[80:81]", 'other')); add(Ins("s_memrealtime s[92:93]", 'other')); add(Ins("s_waitcnt lgkmcnt(0)", 'wait'))
        add(Ins(f"v_writelane_b32 v254, s86, 62", 'valu', [], V(254)))
        add(Ins(f"v_writelane_b32 v254, s92, 61", 'valu', [], V(254)))
        i=stamp_idx[0]
        add(Ins(f"v_writelane_b32 v255, s80, {i}", 'valu', [], V(255)))
        add(Ins(f"v_writelane_b32 v254, s82, {i-1}", 'valu', [], V(254)))
        add(Ins(f"v_writelane_b32 v254, s84, 63", 'valu', [], V(254)))
        add(salu("s_lshl_b32 s4, s2, 13")); add(salu(f"s_add_u32 s4, s4, s{sW1024}")); add(salu("s_add_u32 s4, s4, 0x4000000"))
        add(salu(f"s_mov_b32 s{SRDS+2}, 0x10000000"))
        add(Ins(f"v_lshrrev_b32 v{vST}, 2, v{vST}", 'valu', V(vST), V(vST)))
        add(Ins(f"buffer_store_dword v255, v{vST}, s[{SRDS}:{SRDS+3}], s4 offen", 'vmem_st', V(255)+V(vST), []))
        add(Ins(f"buffer_store_dword v254, v{vST}, s[{SRDS}:{SRDS+3}], s4 offen offset:256", 'vmem_st', V(254)+V(vST), []))
        add(Ins(f"buffer_store_dword v253, v{vST}, s[{SRDS}:{SRDS+3}], s4 offen offset:512", 'vmem_st', V(253)+V(vST), []))
    body=render(finalize(P))
    return body+"L_k1_end:\n    s_endpgm\n"+"\n".join("\n".join(b) for b in ool)+"\n"

def gen_k2():
    P=[]; add=P.append
    def sa(t, rd=(), wr=()): add(salu(t, rd, wr))
    def va(t, rd=(), wr=(), kind='valu'): add(valu(t, rd, wr, kind))
    add(Ins("s_cmp_ge_u32 s2, 1024", 'salu')); add(Ins("s_cbranch_scc1 L_k2_end", 'branch'))
    add(Ins("s_load_dwordx2 s[4:5], s[0:1], 80", 'other'))
    add(Ins("s_load_dwordx2 s[8:9], s[0:1], 96", 'other'))
    sa("s_lshr_b32 s12, s2, 6")
    sa("s_bfe_u32 s13, s2, 0x30003")
    sa("s_and_b32 s14, s2, 7")
    sa("s_lshl_b32 s15, s12, 22"); sa("s_lshl_b32 s16, s13, 15"); sa("s_add_u32 s15, s15, s16")
    sa("s_lshl_b32 s16, s14, 12"); sa("s_add_u32 s15, s15, s16")
    va("v_lshlrev_b32 v1, 4, v0", V(0), V(1))
    add(Ins("s_waitcnt lgkmcnt(0)", 'wait'))
    sa("s_mov_b32 s6, 3932160"); sa("s_mov_b32 s7, 0x20000"); sa("s_mov_b32 s10, 67108864"); sa("s_mov_b32 s11, 0x20000")
    for hp in range(16):
        add(Ins(f"buffer_load_dwordx4 {vr(8+4*hp,4)}, v1, s[8:11], s15 offen {cfg.RPOL}", 'vmem_ld', V(1), V(8+4*hp,4)))
        if hp<15: sa("s_add_u32 s15, s15, 0x40000")
    va("v_and_b32 v2, 31, v0", V(0), V(2))
    va("v_bfe_u32 v3, v0, 5, 1", V(0), V(3))
    va("v_lshrrev_b32 v4, 6, v0", V(0), V(4))
    sa("s_lshl_b32 s16, s13, 5")
    va("v_add_u32 v2, s16, v2", V(2), V(2))
    va("v_lshlrev_b32 v5, 11, v2", V(2), V(5))
    va("v_lshl_add_u32 v5, v4, 5, v5", V(4)+V(5), V(5))
    va("v_lshl_add_u32 v5, v3, 4, v5", V(3)+V(5), V(5))
    sa("s_and_b32 s16, s12, 7"); sa("s_mul_i32 s16, s16, 491520")
    sa("s_lshr_b32 s17, s12, 3"); sa("s_lshl_b32 s17, s17, 10"); sa("s_add_u32 s16, s16, s17")
    sa("s_lshl_b32 s17, s14, 7"); sa("s_add_u32 s16, s16, s17")
    va("v_mov_b32 v6, 0x40000000", [], V(6))
    va("v_cmp_gt_u32 vcc, 240, v2", V(2), [('s','vcc')])
    add(Ins("s_nop 1",'nop'))
    va("v_cndmask_b32 v5, v6, v5, vcc", V(5)+V(6), V(5))
    A=72
    for hp in range(16):
        for i in range(4):
            x=8+4*hp+i
            if hp==0:
                va(f"v_lshlrev_b32 v{A+2*i}, 16, v{x}", V(x), V(A+2*i))
                va(f"v_and_b32 v{A+2*i+1}, 0xffff0000, v{x}", V(x), V(A+2*i+1))
            else:
                va(f"v_lshlrev_b32 v{80}, 16, v{x}", V(x), V(80))
                va(f"v_and_b32 v{81}, 0xffff0000, v{x}", V(x), V(81))
                va(f"v_add_f32 v{A+2*i}, v{A+2*i}, v80", V(A+2*i)+V(80), V(A+2*i))
                va(f"v_add_f32 v{A+2*i+1}, v{A+2*i+1}, v81", V(A+2*i+1)+V(81), V(A+2*i+1))
    for i in range(4):
        va(f"v_cvt_pk_bf16_f32 v{84+i}, v{A+2*i}, v{A+2*i+1}", V(A+2*i,2), V(84+i))
    add(Ins("buffer_store_dwordx4 v[84:87], v5, s[4:7], s16 offen", 'vmem_st', V(84,4)+V(5), []))
    return render(finalize(P))+"L_k2_end:\n    s_endpgm\n"

HEAD = open("cdna_kernels/"+NAME+".s.ref").read().split("; Override launch")[0]
def kd(name, vgpr, sgpr=102):
    return f""".amdhsa_kernel {name}
  .amdhsa_next_free_vgpr {vgpr}
  .amdhsa_next_free_sgpr {sgpr}
  .amdhsa_accum_offset {vgpr}
  .amdhsa_group_segment_fixed_size 0
  .amdhsa_kernarg_size 104
  .amdhsa_user_sgpr_count 2
  .amdhsa_user_sgpr_kernarg_segment_ptr 1
  .amdhsa_system_sgpr_workgroup_id_x 1
.end_amdhsa_kernel
"""
def build():
    s=HEAD
    s+="; @launch kernel=attn_kernel grid=(256,1,1) block=(512,1,1) lds=163840\n"
    s+="; @launch kernel=reduce_kernel grid=(1024,1,1) block=(256,1,1) lds=0\n"
    s+='.amdgcn_target "amdgcn-amd-amdhsa--gfx950"\n.text\n'
    s+=".globl attn_kernel\n.p2align 8\n.type attn_kernel,@function\nattn_kernel:\n"+gen_k1()
    s+=".globl reduce_kernel\n.p2align 8\n.type reduce_kernel,@function\nreduce_kernel:\n"+gen_k2()
    s+='.section .rodata,"a"\n.p2align 6\n'+kd("attn_kernel",256)+".p2align 6\n"+kd("reduce_kernel",88,32)
    return s
if __name__=="__main__":
    out=sys.argv[1]
    for a in sys.argv[2:]:
        k,_,v=a.partition("=")
        if k=="stamp": cfg.STAMP=True
        elif k in ("D","PRIO"): setattr(cfg,k,int(v))
        else: setattr(cfg,k,v.replace("+"," "))
    open(out,"w").write(build()); print("wrote",out)
```

```python
import re

def vr(a, n=1):
    return f"v{a}" if n == 1 else f"v[{a}:{a+n-1}]"
def sr(a, n=1):
    return f"s{a}" if n == 1 else f"s[{a}:{a+n-1}]"
def V(a, n=1):
    return [('v', a+i) for i in range(n)]
def S(a, n=1):
    return [('s', a+i) for i in range(n)]

class Ins:
    __slots__ = ('text','kind','rd','wr','tag','srcc','meta')
    def __init__(self, text, kind, rd=(), wr=(), tag=None, srcc=(), meta=None):
        self.text=text; self.kind=kind; self.rd=list(rd); self.wr=list(wr); self.tag=tag
        self.srcc=list(srcc); self.meta=meta

class Prog:
    def __init__(self):
        self.ins = []
    def add(self, i):
        self.ins.append(i); return i
    def raw(self, text, kind='other', rd=(), wr=(), tag=None):
        return self.add(Ins(text, kind, rd, wr, tag))
def mfma(d, a, b, c=None):
    ctext = '0' if c is None else vr(c,16)
    rd = V(a,4)+V(b,4)+([] if c is None else V(c,16))
    return Ins(f"v_mfma_f32_32x32x16_bf16 {vr(d,16)}, {vr(a,4)}, {vr(b,4)}, {ctext}", 'mfma', rd, V(d,16),
               srcc=([] if c is None else V(c,16)), meta=(d, c))
def valu(text, rd, wr, kind='valu'):
    return Ins(text, kind, rd, wr)
def ds_read_b128(d, addr, off):
    return Ins(f"ds_read_b128 {vr(d,4)}, {vr(addr)} offset:{off}", 'ldsr', V(addr), V(d,4))
def ds_read_tr(d, addr, off):
    return Ins(f"ds_read_b64_tr_b16 {vr(d,2)}, {vr(addr)} offset:{off}", 'ldsr', V(addr), V(d,2))
def ds_write_b128(addr, s, off):
    return Ins(f"ds_write_b128 {vr(addr)}, {vr(s,4)} offset:{off}", 'ldsw', V(addr)+V(s,4), [])
def salu(text, rd=(), wr=()):
    return Ins(text, 'salu', rd, wr)

def finalize(ins_list, lgkm_max=15, vm_max=63):
    out = []
    lg = []
    vm = []
    def need_wait(regs):
        nl = None; nv = None
        rs = set(regs)
        for idx, w in enumerate(lg):
            if w & rs: nl = len(lg)-1-idx
        for idx, (w, t) in enumerate(vm):
            if w & rs: nv = len(vm)-1-idx
        return nl, nv
    def emit_wait(nl, nv):
        nonlocal lg, vm
        parts=[]
        if nv is not None:
            nv=min(nv, vm_max); parts.append(f"vmcnt({nv})"); vm = vm[len(vm)-nv:] if nv>0 else []
        if nl is not None:
            nl=min(nl, lgkm_max); parts.append(f"lgkmcnt({nl})"); lg = lg[len(lg)-nl:] if nl>0 else []
        if parts:
            out.append(Ins("s_waitcnt "+" ".join(parts), 'wait'))
    for i in ins_list:
        if i.kind == 'waittag':
            tags, drain = i.meta
            nv=None
            if tags=='ALL':
                nv=0
            else:
              for idx,(w,t) in enumerate(vm):
                if t in tags: nv=len(vm)-1-idx
            emit_wait(0 if drain else None, nv)
            continue
        if i.kind == 'resetcnt':
            lg=[]; vm=[]; continue
        nl, nv = need_wait(i.rd + i.wr)
        emit_wait(nl, nv)
        out.append(i)
        if i.kind in ('ldsr','ldsw'):
            lg.append(set(i.wr))
            assert len(lg) <= 64
        elif i.kind in ('vmem_ld','dma','vmem_st'):
            vm.append((set(i.wr), i.tag))
            if len(vm) > vm_max:
                raise Exception("too many vm outstanding")
    res = []
    last = {}
    pos = 0
    srcc_rd = {}
    st_rd = {}
    m0pos = -100
    def states(i):
        if i.kind=='nop':
            return int(i.text.split()[1])+1
        if i.kind in ('label',): return 0
        return 1
    for i in out:
        need = 0
        def req(prodpos, n):
            nonlocal need
            d = pos - prodpos - 1
            if d < n: need = max(need, n-d)
        isvalu = i.kind in ('valu','trans','perm')
        for r in i.rd:
            if r in last:
                k,p,ex = last[r]
                if k in ('valu','trans','perm'):
                    if i.kind=='mfma': req(p,2)
                    if i.kind=='perm': req(p,2)
                    if k=='trans' and isvalu: req(p,1)
                    if r[0]=='s':
                        if isvalu: req(p,2)
                        if i.kind in ('vmem_ld','dma','vmem_st'): req(p,5)
                    if i.text.startswith('v_readfirstlane') or i.text.startswith('v_readlane'): req(p,1)
                if k=='mfma':
                    if i.kind=='mfma':
                        if r in i.srcc:
                            if not (i.meta[1]==ex): req(p,10)
                        else: req(p,12)
                    else: req(p,12)
        for r in i.wr:
            if r in last:
                k,p,ex = last[r]
                if k=='mfma' and i.kind!='mfma': req(p,12)
                if k=='mfma' and i.kind=='mfma' and not (i.meta[1]==ex and i.meta[0]==ex):
                    req(p,12)
            if r in srcc_rd and isvalu: req(srcc_rd[r],7)
            if r in st_rd: req(st_rd[r], 2)
        if i.kind in ('dma','dmau'): req(m0pos,1)
        while need>0:
            n=min(need,16)
            res.append(Ins(f"s_nop {n-1}",'nop')); pos+=n; need-=n
        res.append(i)
        for r in i.wr:
            last[r]=(i.kind,pos,(i.meta[0] if i.kind=='mfma' else None))
        if i.kind=='mfma':
            for r in i.srcc: srcc_rd[r]=pos
        if i.kind=='vmem_st':
            for r in i.rd: st_rd[r]=pos
        if any(r==('s','m0') for r in i.wr): m0pos=pos
        pos+=states(i)
    return res

def render(ins):
    lines=[]
    for i in ins:
        if i.kind=='label': lines.append(i.text)
        else: lines.append("    "+i.text)
    return "\n".join(lines)+"\n"
```

```python
import sys, math, os, struct
sys.path.insert(0, "dev")
from asmlib import *

NAME = "concat_heads__mha_block_cached__gqa_block_cached__near_ridge"
M0 = ('s','m0')
f2u = lambda f: struct.unpack('<I', struct.pack('<f', f))[0]

class Cfg:
    STAMP=False; KVPOL='sc1 nt'; WPOL=''; D=6; THR=8.0; ABL=''; STPOL=''; PRIO=0; RPOL=''; GAP=0; MAP=0; KD=5; VD=3
cfg=Cfg()

def gen_k1():
    D=cfg.D; NF=D+2
    P=[]; add=P.append
    def sa(t, rd=(), wr=()): add(salu(t, rd, wr))
    def va(t, rd=(), wr=(), kind='valu'): add(valu(t, rd, wr, kind))
    stamp_idx=[0]
    def bar(tags):
        if cfg.STAMP: add(Ins("s_memtime s[80:81]", 'other')); add(Ins("s_memrealtime s[94:95]", 'other'))
        add(Ins("", 'waittag', meta=(tags, True)))
        if cfg.STAMP:
            i=stamp_idx[0]
            if i>0: add(Ins(f"v_writelane_b32 v253, s94, {i}", 'valu', [], V(253)))
            add(Ins(f"v_writelane_b32 v255, s80, {i}", 'valu', [], V(255)))
            if i>0: add(Ins(f"v_writelane_b32 v254, s82, {i-1}", 'valu', [], V(254)))
            stamp_idx[0]+=1
        if 'B' not in cfg.ABL: add(Ins("s_barrier", 'barrier'))
        if cfg.STAMP: add(Ins("s_memtime s[82:83]", 'other'))
    sBLK,sB,sHP,sW1024,sXOFF,sKV,sWB,sT,sFLAG,sC,sTHR,sWSO,sST,sWOB = range(64,78)
    SRDX,SRDK,SRDV,SRDW,SRDS,SRDO = 44,48,52,56,60,88
    O=0; Q0=64; Q1=96; SB=128; FR=192; AK=224; AV=232
    vDK,vDV=236,237
    vM,vTm,vMREF,vL0,vL1,vALPHA,vA2,vB2 = range(238,246)
    AW=238
    vST,vDW,vDX,vRINV = 246,247,248,249
    vDO = vDW
    t0,t1,t2,t3,t4,t5 = range(250,256)
    if cfg.STAMP: A3C=[196+NF*4-4]*4
    assert FR+4*NF <= AK

    add(Ins("s_cmp_ge_u32 s2, 256", 'salu'))
    add(Ins("s_cbranch_scc1 L_k1_end", 'branch'))
    if cfg.STAMP: add(Ins("s_memtime s[84:85]", 'other')); add(Ins("s_memrealtime s[86:87]", 'other'))
    add(Ins("s_load_dwordx16 s[16:31], s[0:1], 0", 'other'))
    add(Ins("s_load_dwordx4 s[32:35], s[0:1], 64", 'other'))
    add(Ins("s_load_dwordx2 s[36:37], s[0:1], 96", 'other'))
    if cfg.MAP==0:
        sa("s_and_b32 s3, s2, 7"); sa("s_lshr_b32 s4, s2, 3"); sa(f"s_lshr_b32 s{sBLK}, s3, 2")
        sa("s_and_b32 s3, s3, 3"); sa("s_lshl_b32 s3, s3, 2"); sa("s_and_b32 s5, s4, 3")
        sa(f"s_add_u32 s{sHP}, s3, s5"); sa(f"s_lshr_b32 s{sB}, s4, 2")
    else:
        sa("s_and_b32 s3, s2, 7"); sa("s_lshr_b32 s4, s2, 3"); sa(f"s_lshr_b32 s{sBLK}, s3, 2")
        sa("s_and_b32 s3, s3, 3"); sa("s_lshl_b32 s3, s3, 1"); sa("s_lshr_b32 s5, s4, 4")
        sa(f"s_add_u32 s{sB}, s3, s5"); sa(f"s_and_b32 s{sHP}, s4, 15")
    va(f"v_lshrrev_b32 v{t0}, 6, v0", V(0), V(t0))
    va(f"v_and_b32 v0, 63, v0", V(0), V(0))
    va(f"v_readfirstlane_b32 s3, v{t0}", V(t0), S(3))
    va(f"v_lshrrev_b32 v{t1}, 5, v0", V(0), V(t1))
    va(f"v_lshl_add_u32 v{t2}, v{t0}, 1, v{t1}", V(t0)+V(t1), V(t2))
    va(f"v_and_b32 v{t3}, 3, v{t2}", V(t2), V(t3))
    va(f"v_lshlrev_b32 v{t3}, 2, v{t3}", V(t3), V(t3))
    va(f"v_and_b32 v{t4}, 31, v0", V(0), V(t4))
    va(f"v_xor_b32 v{t3}, v{t3}, v{t4}", V(t3)+V(t4), V(t3))
    va(f"v_lshlrev_b32 v{t3}, 4, v{t3}", V(t3), V(t3))
    va(f"v_lshl_add_u32 v{vDW}, v{t2}, 13, v{t3}", V(t2)+V(t3), V(vDW))
    va(f"v_lshl_add_u32 v{t2}, v{t0}, 5, v{t4}", V(t0)+V(t4), V(t2))
    va(f"v_lshlrev_b32 v{t3}, 4, v{t1}", V(t1), V(t3))
    va(f"v_lshl_add_u32 v{vDX}, v{t2}, 10, v{t3}", V(t2)+V(t3), V(vDX))
    sa(f"s_lshl_b32 s{sW1024}, s3, 10", S(3))
    sa(f"s_mul_i32 s{sXOFF}, s{sB}, 245760")
    sa(f"s_lshl_b32 s{sWB}, s{sHP}, 9")
    add(Ins("s_waitcnt lgkmcnt(0)", 'wait'))
    if cfg.STAMP: add(Ins("s_memtime s[96:97]", 'other'))
    sa(f"s_cmp_eq_u32 s{sBLK}, 0")
    sa(f"s_cselect_b64 s[{SRDW}:{SRDW+1}], s[22:23], s[32:33]")
    sa(f"s_cselect_b64 s[{SRDX}:{SRDX+1}], s[16:17], s[26:27]")
    sa(f"s_cselect_b64 s[{SRDK}:{SRDK+1}], s[18:19], s[28:29]")
    sa(f"s_cselect_b64 s[{SRDV}:{SRDV+1}], s[20:21], s[30:31]")
    sa(f"s_cselect_b64 s[{SRDO}:{SRDO+1}], s[24:25], s[34:35]")
    sa(f"s_mov_b64 s[{SRDS}:{SRDS+1}], s[36:37]")
    for srd,n in ((SRDW,4194304),(SRDX,1966080),(SRDK,33554432),(SRDV,33554432),(SRDS,67108864),(SRDO,4194304)):
        sa(f"s_mov_b32 s{srd+2}, {n}"); sa(f"s_mov_b32 s{srd+3}, 0x20000")

    defer=[False]; dq=[]
    def grp(g):
        if defer[0]: dq.append(g)
        else:
            for x in g: add(x)
    def dma(srd, voff, sbase, goff, ldsoff, tag):
        if 'D' in cfg.ABL and tag not in (('W',0),('W',1)): return
        pol = cfg.KVPOL if tag[0] in 'KV' else cfg.WPOL
        grp([salu(f"s_add_u32 m0, s{sW1024}, {ldsoff}", S(sW1024), [M0]),
             salu(f"s_add_u32 s{sT}, s{sbase}, {goff}", S(sbase), S(sT)),
             Ins(f"buffer_load_dwordx4 v{voff}, s[{srd}:{srd+3}], s{sT} offen {pol} lds", 'dma', V(voff)+S(sT)+[M0], [], tag)])
    WSLOT=[6,7,8,9,4,5]
    OSLOT=[8,9,0,1,2,3,4,5,6,7]
    def dmaW(c):
        for h in range(2): dma(SRDW, vDW, sWB, (32*c+16*h)*8192, WSLOT[c%6]*16384+h*8192, ('W',c))
    def dmaK(j):
        for h in range(2): dma(SRDK, vDK, sKV, j*16384+h*8192, (j&3)*16384+h*8192, ('K',j))
    def dmaV(j):
        for h in range(2): dma(SRDV, vDV, sKV, j*16384+h*8192, (4+(j&3))*16384+h*8192, ('V',j))
    def dmaO(i):
        c=i>>2; kt=i&3
        for h in range(2): dma(SRDO, vDO, sWOB, (64*kt+32*h)*1024+c*256, OSLOT[i%10]*16384+h*8192, ('O',i))
    def ldx(s):
        for k in range(4):
            d=Q0+(s&3)*16+k*4
            grp([Ins(f"buffer_load_dwordx4 {vr(d,4)}, v{vDX}, s[{SRDX}:{SRDX+3}], s{sXOFF} offen offset:{(4*s+k)*32}",
                    'vmem_ld', V(vDX)+S(sXOFF), V(d,4))])
    dmaW(0); dmaW(1)
    if cfg.STAMP: add(Ins("s_memtime s[98:99]", 'other'))
    ldx(0)
    if cfg.STAMP: add(Ins("s_memtime s[100:101]", 'other'))
    if 'p' in cfg.ABL: defer[0]=True
    dmaW(2); dmaW(3); ldx(1); dmaW(4); dmaW(5); ldx(2)
    defer[0]=False
    if cfg.STAMP: add(Ins("s_memtime s[78:79]", 'other'))
    sa(f"s_lshl_b32 s4, s{sB}, 5"); sa(f"s_lshl_b32 s5, s{sHP}, 1"); sa("s_add_u32 s4, s4, s5")
    sa(f"s_lshl_b32 s{sKV}, s4, 17")
    sa(f"s_mov_b32 s{sFLAG}, 0")
    sa(f"s_mov_b32 s{sC}, {hex(f2u(math.log2(math.e)/math.sqrt(128.0)))}")
    sa(f"s_mov_b32 s{sTHR}, {hex(f2u(cfg.THR))}")
    sa(f"s_lshl_b32 s4, s{sBLK}, 3"); sa(f"s_add_u32 s4, s4, s{sB}"); sa("s_lshl_b32 s4, s4, 4")
    sa(f"s_add_u32 s4, s4, s{sHP}"); sa("s_lshl_b32 s4, s4, 3"); sa("s_add_u32 s4, s4, s3")
    sa(f"s_lshl_b32 s{sWSO}, s4, 15")
    sa(f"s_lshl_b32 s{sWOB}, s{sHP}, 18")
    va(f"v_lshrrev_b32 v{t2}, 4, v0", V(0), V(t2))
    va(f"v_lshl_add_u32 v{t3}, v{t0}, 2, v{t2}", V(t0)+V(t2), V(t3))
    va(f"v_and_b32 v{t5}, 15, v0", V(0), V(t5))
    va(f"v_xor_b32 v{vDK}, v{t3}, v{t5}", V(t3)+V(t5), V(vDK))
    va(f"v_and_b32 v{vDK}, 15, v{vDK}", V(vDK), V(vDK))
    va(f"v_lshlrev_b32 v{vDK}, 4, v{vDK}", V(vDK), V(vDK))
    va(f"v_lshl_add_u32 v{vDK}, v{t3}, 8, v{vDK}", V(t3)+V(vDK), V(vDK))
    va(f"v_lshlrev_b32 v{vDV}, 2, v{t2}", V(t2), V(vDV))
    va(f"v_xor_b32 v{vDV}, v{vDV}, v{t5}", V(vDV)+V(t5), V(vDV))
    va(f"v_lshlrev_b32 v{vDV}, 4, v{vDV}", V(vDV), V(vDV))
    va(f"v_lshl_add_u32 v{vRINV}, v{t3}, 10, v{vDV}", V(t3)+V(vDV), V(vRINV))
    va(f"v_lshl_add_u32 v{vDV}, v{t3}, 8, v{vDV}", V(t3)+V(vDV), V(vDV))
    va(f"v_bfe_u32 v{t2}, v0, 2, 2", V(0), V(t2))
    va(f"v_bfe_u32 v{t3}, v0, 4, 1", V(0), V(t3))
    va(f"v_and_b32 v{t5}, 1, v0", V(0), V(t5))
    va(f"v_lshl_add_u32 v{t3}, v{t3}, 1, v{t5}", V(t3)+V(t5), V(t3))
    va(f"v_lshlrev_b32 v{t3}, 4, v{t3}", V(t3), V(t3))
    va(f"v_bfe_u32 v{t5}, v0, 1, 1", V(0), V(t5))
    va(f"v_lshl_add_u32 v{t3}, v{t5}, 3, v{t3}", V(t3)+V(t5), V(t3))
    va(f"v_lshl_add_u32 v{t5}, v{t1}, 2, v{t2}", V(t1)+V(t2), V(t5))
    va(f"v_lshl_add_u32 v{t5}, v{t5}, 8, v{t3}", V(t5)+V(t3), V(t5))
    va(f"v_add_u32 v{t5}, 0x10000, v{t5}", V(t5), V(t5))
    for t in range(4):
        va(f"v_xor_b32 v{AV+t}, {t}, v{t2}", V(t2), V(AV+t))
        va(f"v_lshl_add_u32 v{AV+t}, v{AV+t}, 6, v{t5}", V(AV+t)+V(t5), V(AV+t))
    va(f"v_lshl_add_u32 v{t5}, v{t1}, 3, v{t2}", V(t1)+V(t2), V(t5))
    va(f"v_lshl_add_u32 v{t5}, v{t5}, 9, v{t3}", V(t5)+V(t3), V(t5))
    va(f"v_add_u32 v{t5}, 0x10000, v{t5}", V(t5), V(t5))
    for t in range(4):
        va(f"v_xor_b32 v{AW+t}, {t}, v{t2}", V(t2), V(AW+t))
        va(f"v_lshl_add_u32 v{AW+t}, v{AW+t}, 6, v{t5}", V(AW+t)+V(t5), V(AW+t))
        va(f"v_add_u32 v{AW+4+t}, 0x10000, v{AW+t}", V(AW+t), V(AW+4+t))
    va(f"v_and_b32 v{t5}, 15, v{t4}", V(t4), V(t5))
    va(f"v_xor_b32 v{t5}, v{t5}, v{t1}", V(t5)+V(t1), V(t5))
    va(f"v_lshlrev_b32 v{t5}, 4, v{t5}", V(t5), V(t5))
    va(f"v_lshl_add_u32 v{t5}, v{t4}, 8, v{t5}", V(t4)+V(t5), V(t5))
    for ks in range(8):
        va(f"v_xor_b32 v{AK+ks}, {ks<<5}, v{t5}", V(t5), V(AK+ks))
    va(f"v_lshlrev_b32 v{vST}, 4, v0", V(0), V(vST))
    if cfg.PRIO:
        sa(f"s_cmp_lt_u32 s3, 4"); add(Ins("s_cbranch_scc1 L_noprio",'branch')); add(Ins(f"s_setprio {cfg.PRIO}",'other')); add(Ins("L_noprio:",'label'))

    ops=[]; bp={}; ool=[]
    def QACC(t): return (SB+16*t) if t<4 else (O+16*(t-4))
    for s in range(8):
        for sp in range(4):
            c=2*s+(sp>>1); sl=WSLOT[c%6]
            for t in range(8):
                areg=AW+(t&3)+(4 if sl>=8 else 0)
                off=((sl-4) if sl<8 else (sl-8))*16384+(sp&1)*8192+(t>>2)*256
                xb=Q0+(s&3)*16+sp*4; first=(s==0 and sp==0)
                ops.append(dict(step=('p1',s),
                    reads=(lambda f,areg=areg,off=off:[ds_read_tr(f,areg,off),ds_read_tr(f+2,areg,off+2048)]),
                    m=(lambda f,t=t,xb=xb,first=first: mfma(QACC(t),f,xb,None if first else QACC(t))), valu=[]))
        def bpf(s=s):
            bar([('W',2*s+2),('W',2*s+3)] if s<7 else [('K',0)])
            if 2*s+6<=15: dmaW(2*s+6); dmaW(2*s+7)
            if s+3<=7: ldx(s+3)
            if 'k' in cfg.ABL:
                if s<4: dmaK(s)
                if s==5: dmaV(0); dmaV(1)
            else:
                if s==4: dmaK(0); dmaK(1)
                if s==5: dmaK(2); dmaV(0); dmaK(3); dmaV(1)
            if s==6: dmaV(2); dmaV(3)
            if s==7: va(f"v_mov_b32 v{vDO}, v{vRINV}", V(vRINV), V(vDO))
        bp[('p1',s)]=bpf
    def pack(dst, acc, scale=None):
        r=[]
        for tt in range(4):
            for h in range(2):
                b0=acc+16*tt+8*h
                if scale is not None:
                    for i in range(8):
                        r.append(valu(f"v_mul_f32 v{b0+i}, v{b0+i}, v{scale}", V(b0+i)+V(scale), V(b0+i)))
                for j in range(4):
                    a=b0+2*j; d=dst+(2*tt+h)*4+j
                    r.append(valu(f"v_cvt_pk_bf16_f32 v{d}, v{a}, v{a+1}", V(a,2), V(d)))
        return r
    def softmax(j):
        sb=SB+32*(j&1); r=[]
        A=[sb+i for i in range(16)]; B=[sb+16+i for i in range(16)]
        r.append(valu(f"v_max3_f32 v{vA2}, v{A[0]}, v{A[1]}, v{A[2]}", V(A[0],3), V(vA2)))
        for k in range(3,15,2): r.append(valu(f"v_max3_f32 v{vA2}, v{vA2}, v{A[k]}, v{A[k+1]}", V(vA2)+V(A[k],2), V(vA2)))
        r.append(valu(f"v_max3_f32 v{vB2}, v{B[0]}, v{B[1]}, v{B[2]}", V(B[0],3), V(vB2)))
        for k in range(3,15,2): r.append(valu(f"v_max3_f32 v{vB2}, v{vB2}, v{B[k]}, v{B[k+1]}", V(vB2)+V(B[k],2), V(vB2)))
        r.append(valu(f"v_max3_f32 v{vM}, v{vA2}, v{A[15]}, v{B[15]}", V(vA2)+V(A[15])+V(B[15]), V(vM)))
        r.append(valu(f"v_max_f32 v{vM}, v{vM}, v{vB2}", V(vM)+V(vB2), V(vM)))
        r.append(valu(f"v_mov_b32 v{vTm}, v{vM}", V(vM), V(vTm)))
        r.append(valu(f"v_permlane32_swap_b32 v{vM}, v{vTm}", V(vM)+V(vTm), V(vM)+V(vTm), 'perm'))
        r.append(valu(f"v_max_f32 v{vM}, v{vM}, v{vTm}", V(vM)+V(vTm), V(vM)))
        if j%8==0:
            r.append(valu(f"v_mul_f32 v{vMREF}, s{sC}, v{vM}", V(vM), V(vMREF)))
            r.append(valu(f"v_mov_b32 v{vL0}, 0", [], V(vL0)))
            r.append(valu(f"v_mov_b32 v{vL1}, 0", [], V(vL1)))
        else:
            r.append(valu(f"v_fma_f32 v{vTm}, v{vM}, s{sC}, -v{vMREF}", V(vM)+V(vMREF), V(vTm)))
            r.append(valu(f"v_cmp_lt_f32 vcc, s{sTHR}, v{vTm}", V(vTm), [('s','vcc')]))
            r.append(Ins(f"s_cbranch_vccnz L_rare1_{j}", 'branch'))
            r.append(Ins(f"L_back1_{j}:", 'label'))
            ool.append([f"L_rare1_{j}:", "    s_nop 4",
                f"    v_mul_f32 v{vTm}, s{sC}, v{vM}", f"    v_max_f32 v{vTm}, v{vTm}, v{vMREF}",
                f"    v_sub_f32 v{vALPHA}, v{vMREF}, v{vTm}", f"    v_exp_f32 v{vALPHA}, v{vALPHA}",
                f"    v_mov_b32 v{vMREF}, v{vTm}", "    s_nop 1",
                f"    v_mul_f32 v{vL0}, v{vL0}, v{vALPHA}", f"    v_mul_f32 v{vL1}, v{vL1}, v{vALPHA}",
                f"    s_mov_b32 s{sFLAG}, 1", "    s_nop 4", f"    s_branch L_back1_{j}"])
        for h in range(4):
            base=sb+8*h
            for i in range(8):
                x=base+i; r.append(valu(f"v_fma_f32 v{x}, v{x}, s{sC}, -v{vMREF}", V(x)+V(vMREF), V(x)))
            for i in range(8):
                x=base+i; r.append(valu(f"v_exp_f32 v{x}, v{x}", V(x), V(x), 'trans'))
            for i in range(8):
                x=base+i; L=vL0 if i%2==0 else vL1
                r.append(valu(f"v_add_f32 v{L}, v{L}, v{x}", V(L)+V(x), V(L)))
            for jj in range(4):
                r.append(valu(f"v_cvt_pk_bf16_f32 v{base+jj}, v{base+2*jj}, v{base+2*jj+1}", V(base+2*jj,2), V(base+jj)))
        if 'V' in cfg.ABL: r=[x for x in r if x.kind in ('branch','label')]
        if 'F' in cfg.ABL:
            r=[x for x in r if not (x.text.startswith('v_fma_f32') and 'v%d,'%vTm not in x.text.split()[1]) ]
            r=[x for x in r if not (x.text.startswith('v_add_f32 v%d'%vL1))]
        return r
    def rescale_check(j):
        ool.append([f"L_rare2_{j}:", "    s_nop 15", "    s_nop 7"]+
                   [f"    v_mul_f32 v{O+i}, v{O+i}, v{vALPHA}" for i in range(64)]+
                   [f"    s_mov_b32 s{sFLAG}, 0", "    s_nop 7", f"    s_branch L_back2_{j}"])
        return [Ins(f"s_cmp_lg_u32 s{sFLAG}, 0",'salu'), Ins(f"s_cbranch_scc1 L_rare2_{j}",'branch'), Ins(f"L_back2_{j}:",'label')]
    def finalize_l():
        return [valu(f"v_add_f32 v{t0}, v{vL0}, v{vL1}", V(vL0)+V(vL1), V(t0)),
                valu(f"v_mov_b32 v{t1}, v{t0}", V(t0), V(t1)),
                valu(f"v_permlane32_swap_b32 v{t0}, v{t1}", V(t0)+V(t1), V(t0)+V(t1), 'perm'),
                valu(f"v_add_f32 v{t0}, v{t0}, v{t1}", V(t0)+V(t1), V(t0)),
                valu(f"v_rcp_f32 v{vRINV}, v{t0}", V(t0), V(vRINV), 'trans')]
    def spread(vl, a, b, front=False):
        n=b-a; per=(len(vl)+n-1)//n; k=0
        for i in range(a,b):
            if front: ops[i]['valu']=vl[k:k+per]+ops[i]['valu']
            else: ops[i]['valu']+=vl[k:k+per]
            k+=per
    for j in range(-1,17):
        st=('p2',j); n0=len(ops)
        if 0<=j-1<=15:
            jj=j-1; pb=SB+32*(jj&1)
            for p in range(4):
                for t in range(4):
                    off=(jj&3)*16384+p*4096; first=(jj%8==0 and p==0)
                    ops.append(dict(step=st,
                        reads=(lambda f,t=t,off=off:[ds_read_tr(f,AV+t,off),ds_read_tr(f+2,AV+t,off+2048)]),
                        m=(lambda f,t=t,p=p,pb=pb,first=first: mfma(O+16*t,f,pb+8*p,None if first else O+16*t)), valu=[]))
        n1=len(ops)
        if j+1<=15:
            jj=j+1; sb=SB+32*(jj&1); Q=Q0 if jj<8 else Q1
            for kt,ks in ([(a,b) for a in range(2) for b in range(8)] if 'I' not in cfg.ABL else [(a,b) for b in range(8) for a in range(2)]):
                if True:
                    off=(jj&3)*16384+kt*8192
                    ops.append(dict(step=st,
                        reads=(lambda f,ks=ks,off=off:[ds_read_b128(f,AK+ks,off)]),
                        m=(lambda f,kt=kt,ks=ks,sb=sb,Q=Q: mfma(sb+16*kt,f,Q+4*ks,None if ks==0 else sb+16*kt)), valu=[]))
        n2=len(ops)
        vl=softmax(j) if 0<=j<=15 else []
        if j%8==7: vl=vl+finalize_l()
        if j==-1: vl=pack(Q1,O)
        if j==15:
            extra=[valu(f"v_lshrrev_b32 v{t2}, 9, v{vST}", V(vST), V(t2)),
                   valu(f"v_lshlrev_b32 v{t2}, 10, v{t2}", V(t2), V(t2))]
            for t in range(4):
                extra.append(valu(f"v_add_u32 v{AK+4+t}, v{AV+t}, v{t2}", V(AV+t)+V(t2), V(AK+4+t)))
                extra.append(valu(f"v_subrev_u32 v{AK+t}, 0x10000, v{AK+4+t}", V(AK+4+t), V(AK+t)))
            vl=vl+extra
        if vl: spread(vl,n0,n2)
        if 1<=j<=15 and j%8!=0:
            if n1<n2: ops[n1]['valu']=rescale_check(j)+ops[n1]['valu']
            else: ops[n1-1]['post']=rescale_check(j)
        if j==8: spread(pack(Q0,O,vRINV), n1, n2)
        def bpf(j=j):
            tags=[]
            if 0<=j<=15: tags.append(('V',j))
            if j+2<=15: tags.append(('K',j+2))
            if j==16: tags+= [('O',0),('O',1)]
            bar(tags)
            if 4<=j+cfg.KD<=15: dmaK(j+cfg.KD)
            if 4<=j+cfg.VD<=15: dmaV(j+cfg.VD)
            for i,jj in ((0,8),(1,9),(2,11),(3,12),(4,13),(5,14),(6,13),(7,14),(8,15),(9,16)):
                if jj==j: dmaO(i)
        bp[st]=bpf
    spread(pack(Q0,SB), 8*32-3, 8*32+1, front=True)
    def ACC3(c): return SB if c%2==0 else O
    def store3(c):
        r=[salu(f"s_add_u32 s{sST}, s{sWSO}, {c*8192}", S(sWSO), S(sST))]
        acc=ACC3(c)
        for t in range(4):
            for h in range(2):
                base=acc+16*t+8*h; k=2*t+h
                for jj in range(4):
                    r.append(valu(f"v_cvt_pk_bf16_f32 v{base+jj}, v{base+2*jj}, v{base+2*jj+1}", V(base+2*jj,2), V(base+jj)))
                r.append(Ins(f"buffer_store_dwordx4 {vr(base,4)}, v{vST}, s[{SRDS}:{SRDS+3}], s{sST} offen offset:{(k&3)*1024} {cfg.STPOL}",
                             'vmem_st', V(base,4)+V(vST)+S(sST), []))
                if k==3: r.append(salu(f"s_add_u32 s{sST}, s{sWSO}, {c*8192+4096}", S(sWSO), S(sST)))
        return r
    p3start=len(ops)
    for q in range(8):
        st=('p3',q); n0=len(ops)
        for i in (2*q,2*q+1):
            c=i>>2; kt=i&3; sl=OSLOT[i%10]
            for p in range(4):
                for t in range(4):
                    if sl<4: areg=AK+t; off=sl*16384
                    elif sl<8: areg=AK+4+t; off=(sl-4)*16384
                    else: areg=AK+4+t; off=(sl-4)*16384
                    off+=p*4096
                    bb=(Q0+4*(4*kt+p)) if kt<2 else (Q1+4*(4*(kt-2)+p))
                    first=(kt==0 and p==0); acc=ACC3(c)+16*t
                    if sl>=8:
                        areg=('C',t); off=(sl-8)*16384+p*4096
                    ops.append(dict(step=st, areg=areg,
                        reads=(lambda f,areg=areg,off=off:[ds_read_tr(f,A3(areg),off),ds_read_tr(f+2,A3(areg),off+1024)]),
                        m=(lambda f,bb=bb,acc=acc,first=first: mfma(acc,f,bb,None if first else acc)), valu=[]))
        n2=len(ops)
        if q==0: spread(pack(Q1,O,vRINV), n0+2, n2-4)
        if q>=2 and q%2==0: spread(store3(q//2-1), n0+2, n0+20)
        def bpf(q=q):
            bar([('O',2*q+2),('O',2*q+3)])
            if 2*q+10<=15: dmaO(2*q+10); dmaO(2*q+11)
        bp[st]=bpf
    ops[-1]['post']=store3(3)
    C3=[t2,t3,t4,t5] if not cfg.STAMP else [t2,vM,vA2,vB2]
    def A3(a): return C3[a[1]] if isinstance(a,tuple) else a
    idx=[i for i,o in enumerate(ops) if o['step']==('p2',16)][0]
    for t in range(4):
        ops[idx]['valu'].append(valu(f"v_add_u32 v{C3[t]}, 0x10000, v{AK+4+t}", V(AK+4+t), V(C3[t])))

    N=len(ops)
    bar([('W',0),('W',1)])
    if cfg.STAMP:
        for k,sg in enumerate((96,98,100,78)): add(Ins(f"v_writelane_b32 v254, s{sg}, {50+k}", 'valu', [], V(254)))
    def fr(i): return FR+4*(i%NF)
    for i in range(D):
        for r in ops[i]['reads'](fr(i)): add(r)
    if cfg.GAP==0:
        while dq:
            for x in dq.pop(0): add(x)
    defer[0]=cfg.GAP>0
    cnt=cfg.GAP
    for i in range(N):
        if i+D<N:
            if ops[i+D]['step']!=ops[i+D-1]['step']:
                while dq:
                    for x in dq.pop(0): add(x)
                bp[ops[i+D-1]['step']](); cnt=cfg.GAP-1
            for r in ops[i+D]['reads'](fr(i+D)): add(r)
        cnt+=1
        if dq and cnt>=cfg.GAP:
            for x in dq.pop(0): add(x)
            cnt=0
        for v in ops[i]['valu']: add(v)
        add(ops[i]['m'](fr(i)))
        for v in ops[i].get('post',[]): add(v)
    if cfg.STAMP:
        add(Ins("s_memtime s[80:81]", 'other')); add(Ins("s_memrealtime s[92:93]", 'other')); add(Ins("s_waitcnt lgkmcnt(0)", 'wait'))
        add(Ins(f"v_writelane_b32 v254, s86, 62", 'valu', [], V(254)))
        add(Ins(f"v_writelane_b32 v254, s92, 61", 'valu', [], V(254)))
        i=stamp_idx[0]
        add(Ins(f"v_writelane_b32 v255, s80, {i}", 'valu', [], V(255)))
        add(Ins(f"v_writelane_b32 v254, s82, {i-1}", 'valu', [], V(254)))
        add(Ins(f"v_writelane_b32 v254, s84, 63", 'valu', [], V(254)))
        add(salu("s_lshl_b32 s4, s2, 13")); add(salu(f"s_add_u32 s4, s4, s{sW1024}")); add(salu("s_add_u32 s4, s4, 0x4000000"))
        add(salu(f"s_mov_b32 s{SRDS+2}, 0x10000000"))
        add(Ins(f"v_lshrrev_b32 v{vST}, 2, v{vST}", 'valu', V(vST), V(vST)))
        add(Ins(f"buffer_store_dword v255, v{vST}, s[{SRDS}:{SRDS+3}], s4 offen", 'vmem_st', V(255)+V(vST), []))
        add(Ins(f"buffer_store_dword v254, v{vST}, s[{SRDS}:{SRDS+3}], s4 offen offset:256", 'vmem_st', V(254)+V(vST), []))
        add(Ins(f"buffer_store_dword v253, v{vST}, s[{SRDS}:{SRDS+3}], s4 offen offset:512", 'vmem_st', V(253)+V(vST), []))
    body=render(finalize(P))
    return body+"L_k1_end:\n    s_endpgm\n"+"\n".join("\n".join(b) for b in ool)+"\n"

def gen_k2():
    P=[]; add=P.append
    def sa(t, rd=(), wr=()): add(salu(t, rd, wr))
    def va(t, rd=(), wr=(), kind='valu'): add(valu(t, rd, wr, kind))
    add(Ins("s_cmp_ge_u32 s2, 1024", 'salu')); add(Ins("s_cbranch_scc1 L_k2_end", 'branch'))
    add(Ins("s_load_dwordx2 s[4:5], s[0:1], 80", 'other'))
    add(Ins("s_load_dwordx2 s[8:9], s[0:1], 96", 'other'))
    if cfg.MAP==0:
        sa("s_lshr_b32 s12, s2, 6")
        sa("s_bfe_u32 s13, s2, 0x30003")
        sa("s_and_b32 s14, s2, 7")
    else:
        sa("s_and_b32 s12, s2, 7"); sa("s_lshl_b32 s12, s12, 1"); sa("s_lshr_b32 s13, s2, 9"); sa("s_add_u32 s12, s12, s13")
        sa("s_bfe_u32 s13, s2, 0x30003")
        sa("s_bfe_u32 s14, s2, 0x30006"); sa("s_sub_u32 s14, 7, s14")
    sa("s_lshl_b32 s15, s12, 22"); sa("s_lshl_b32 s16, s13, 15"); sa("s_add_u32 s15, s15, s16")
    sa("s_lshl_b32 s16, s14, 12"); sa("s_add_u32 s15, s15, s16")
    va("v_lshlrev_b32 v1, 4, v0", V(0), V(1))
    add(Ins("s_waitcnt lgkmcnt(0)", 'wait'))
    sa("s_mov_b32 s6, 3932160"); sa("s_mov_b32 s7, 0x20000"); sa("s_mov_b32 s10, 67108864"); sa("s_mov_b32 s11, 0x20000")
    for hp in range(16):
        add(Ins(f"buffer_load_dwordx4 {vr(8+4*hp,4)}, v1, s[8:11], s15 offen {cfg.RPOL}", 'vmem_ld', V(1), V(8+4*hp,4)))
        if hp<15: sa("s_add_u32 s15, s15, 0x40000")
    va("v_and_b32 v2, 31, v0", V(0), V(2))
    va("v_bfe_u32 v3, v0, 5, 1", V(0), V(3))
    va("v_lshrrev_b32 v4, 6, v0", V(0), V(4))
    sa("s_lshl_b32 s16, s13, 5")
    va("v_add_u32 v2, s16, v2", V(2), V(2))
    va("v_lshlrev_b32 v5, 11, v2", V(2), V(5))
    va("v_lshl_add_u32 v5, v4, 5, v5", V(4)+V(5), V(5))
    va("v_lshl_add_u32 v5, v3, 4, v5", V(3)+V(5), V(5))
    sa("s_and_b32 s16, s12, 7"); sa("s_mul_i32 s16, s16, 491520")
    sa("s_lshr_b32 s17, s12, 3"); sa("s_lshl_b32 s17, s17, 10"); sa("s_add_u32 s16, s16, s17")
    sa("s_lshl_b32 s17, s14, 7"); sa("s_add_u32 s16, s16, s17")
    va("v_mov_b32 v6, 0x40000000", [], V(6))
    va("v_cmp_gt_u32 vcc, 240, v2", V(2), [('s','vcc')])
    add(Ins("s_nop 1",'nop'))
    va("v_cndmask_b32 v5, v6, v5, vcc", V(5)+V(6), V(5))
    A=72
    for hp in range(16):
        for i in range(4):
            x=8+4*hp+i
            if hp==0:
                va(f"v_lshlrev_b32 v{A+2*i}, 16, v{x}", V(x), V(A+2*i))
                va(f"v_and_b32 v{A+2*i+1}, 0xffff0000, v{x}", V(x), V(A+2*i+1))
            else:
                va(f"v_lshlrev_b32 v{80}, 16, v{x}", V(x), V(80))
                va(f"v_and_b32 v{81}, 0xffff0000, v{x}", V(x), V(81))
                va(f"v_add_f32 v{A+2*i}, v{A+2*i}, v80", V(A+2*i)+V(80), V(A+2*i))
                va(f"v_add_f32 v{A+2*i+1}, v{A+2*i+1}, v81", V(A+2*i+1)+V(81), V(A+2*i+1))
    for i in range(4):
        va(f"v_cvt_pk_bf16_f32 v{84+i}, v{A+2*i}, v{A+2*i+1}", V(A+2*i,2), V(84+i))
    add(Ins("buffer_store_dwordx4 v[84:87], v5, s[4:7], s16 offen", 'vmem_st', V(84,4)+V(5), []))
    return render(finalize(P))+"L_k2_end:\n    s_endpgm\n"

HEAD = open("cdna_kernels/"+NAME+".s.ref").read().split("; Override launch")[0]
def kd(name, vgpr, sgpr=102):
    return f""".amdhsa_kernel {name}
  .amdhsa_next_free_vgpr {vgpr}
  .amdhsa_next_free_sgpr {sgpr}
  .amdhsa_accum_offset {vgpr}
  .amdhsa_group_segment_fixed_size 0
  .amdhsa_kernarg_size 104
  .amdhsa_user_sgpr_count 2
  .amdhsa_user_sgpr_kernarg_segment_ptr 1
  .amdhsa_system_sgpr_workgroup_id_x 1
.end_amdhsa_kernel
"""
def build():
    s=HEAD
    s+="; @launch kernel=attn_kernel grid=(256,1,1) block=(512,1,1) lds=163840\n"
    s+="; @launch kernel=reduce_kernel grid=(1024,1,1) block=(256,1,1) lds=0\n"
    s+='.amdgcn_target "amdgcn-amd-amdhsa--gfx950"\n.text\n'
    s+=".globl attn_kernel\n.p2align 8\n.type attn_kernel,@function\nattn_kernel:\n"+gen_k1()
    s+=".globl reduce_kernel\n.p2align 8\n.type reduce_kernel,@function\nreduce_kernel:\n"+gen_k2()
    s+='.section .rodata,"a"\n.p2align 6\n'+kd("attn_kernel",256)+".p2align 6\n"+kd("reduce_kernel",88,32)
    return s
if __name__=="__main__":
    out=sys.argv[1]
    for a in sys.argv[2:]:
        k,_,v=a.partition("=")
        if k=="stamp": cfg.STAMP=True
        elif k in ("D","PRIO","GAP","KD","VD","MAP"): setattr(cfg,k,int(v))
        else: setattr(cfg,k,v.replace("+"," "))
    open(out,"w").write(build()); print("wrote",out)
```

```python
import sys, math, os, struct
sys.path.insert(0, "dev")
from asmlib import *

NAME = "concat_heads__mha_block_cached__gqa_block_cached__near_ridge"
M0 = ('s','m0')
f2u = lambda f: struct.unpack('<I', struct.pack('<f', f))[0]

class Cfg:
    STAMP=False; KVPOL='sc1 nt'; WPOL=''; D=6; THR=8.0; ABL=''; STPOL=''; PRIO=0; RPOL=''; GAP=0; STAG=0; MAP=0; KD=5; VD=3
cfg=Cfg()

def gen_k1():
    D=cfg.D; NF=D+2
    P=[]; add=P.append
    def sa(t, rd=(), wr=()): add(salu(t, rd, wr))
    def va(t, rd=(), wr=(), kind='valu'): add(valu(t, rd, wr, kind))
    stamp_idx=[0]
    def bar(tags):
        if cfg.STAMP: add(Ins("s_memtime s[80:81]", 'other')); add(Ins("s_memrealtime s[94:95]", 'other'))
        add(Ins("", 'waittag', meta=(tags, True)))
        if cfg.STAMP:
            i=stamp_idx[0]
            if i>0: add(Ins(f"v_writelane_b32 v253, s94, {i}", 'valu', [], V(253)))
            add(Ins(f"v_writelane_b32 v255, s80, {i}", 'valu', [], V(255)))
            if i>0: add(Ins(f"v_writelane_b32 v254, s82, {i-1}", 'valu', [], V(254)))
            stamp_idx[0]+=1
        if 'B' not in cfg.ABL: add(Ins("s_barrier", 'barrier'))
        if cfg.STAMP: add(Ins("s_memtime s[82:83]", 'other'))
    sBLK,sB,sHP,sW1024,sXOFF,sKV,sWB,sT,sFLAG,sC,sTHR,sWSO,sST,sWOB = range(64,78)
    SRDX,SRDK,SRDV,SRDW,SRDS,SRDO = 44,48,52,56,60,88
    O=0; Q0=64; Q1=96; SB=128; FR=192; AK=224; AV=232
    vDK,vDV=236,237
    vM,vTm,vMREF,vL0,vL1,vALPHA,vA2,vB2 = range(238,246)
    AW=238
    vST,vDW,vDX,vRINV = 246,247,248,249
    vDO = vDW
    t0,t1,t2,t3,t4,t5 = range(250,256)
    if cfg.STAMP: A3C=[196+NF*4-4]*4
    assert FR+4*NF <= AK

    add(Ins("s_cmp_ge_u32 s2, 256", 'salu'))
    add(Ins("s_cbranch_scc1 L_k1_end", 'branch'))
    if cfg.STAMP: add(Ins("s_memtime s[84:85]", 'other')); add(Ins("s_memrealtime s[86:87]", 'other'))
    add(Ins("s_load_dwordx16 s[16:31], s[0:1], 0", 'other'))
    add(Ins("s_load_dwordx4 s[32:35], s[0:1], 64", 'other'))
    add(Ins("s_load_dwordx2 s[36:37], s[0:1], 96", 'other'))
    if cfg.MAP==0:
        sa("s_and_b32 s3, s2, 7"); sa("s_lshr_b32 s4, s2, 3"); sa(f"s_lshr_b32 s{sBLK}, s3, 2")
        sa("s_and_b32 s3, s3, 3"); sa("s_lshl_b32 s3, s3, 2"); sa("s_and_b32 s5, s4, 3")
        sa(f"s_add_u32 s{sHP}, s3, s5"); sa(f"s_lshr_b32 s{sB}, s4, 2")
    else:
        sa("s_and_b32 s3, s2, 7"); sa("s_lshr_b32 s4, s2, 3"); sa(f"s_lshr_b32 s{sBLK}, s3, 2")
        sa("s_and_b32 s3, s3, 3"); sa("s_lshl_b32 s3, s3, 1"); sa("s_lshr_b32 s5, s4, 4")
        sa(f"s_add_u32 s{sB}, s3, s5"); sa(f"s_and_b32 s{sHP}, s4, 15")
    va(f"v_lshrrev_b32 v{t0}, 6, v0", V(0), V(t0))
    va(f"v_and_b32 v0, 63, v0", V(0), V(0))
    va(f"v_readfirstlane_b32 s3, v{t0}", V(t0), S(3))
    va(f"v_lshrrev_b32 v{t1}, 5, v0", V(0), V(t1))
    va(f"v_lshl_add_u32 v{t2}, v{t0}, 1, v{t1}", V(t0)+V(t1), V(t2))
    va(f"v_and_b32 v{t3}, 3, v{t2}", V(t2), V(t3))
    va(f"v_lshlrev_b32 v{t3}, 2, v{t3}", V(t3), V(t3))
    va(f"v_and_b32 v{t4}, 31, v0", V(0), V(t4))
    va(f"v_xor_b32 v{t3}, v{t3}, v{t4}", V(t3)+V(t4), V(t3))
    va(f"v_lshlrev_b32 v{t3}, 4, v{t3}", V(t3), V(t3))
    va(f"v_lshl_add_u32 v{vDW}, v{t2}, 13, v{t3}", V(t2)+V(t3), V(vDW))
    va(f"v_lshl_add_u32 v{t2}, v{t0}, 5, v{t4}", V(t0)+V(t4), V(t2))
    va(f"v_lshlrev_b32 v{t3}, 4, v{t1}", V(t1), V(t3))
    va(f"v_lshl_add_u32 v{vDX}, v{t2}, 10, v{t3}", V(t2)+V(t3), V(vDX))
    if 'z' in cfg.ABL:
        va(f"v_mov_b32 v{t3}, 0x40000000", [], V(t3))
        va(f"v_cmp_gt_u32 vcc, 240, v{t2}", V(t2), [('s','vcc')])
        add(Ins("s_nop 1",'nop'))
        va(f"v_cndmask_b32 v{vDX}, v{t3}, v{vDX}, vcc", V(t3)+V(vDX), V(vDX))
    sa(f"s_lshl_b32 s{sW1024}, s3, 10", S(3))
    sa(f"s_mul_i32 s{sXOFF}, s{sB}, 245760")
    sa(f"s_lshl_b32 s{sWB}, s{sHP}, 9")
    add(Ins("s_waitcnt lgkmcnt(0)", 'wait'))
    if cfg.STAMP: add(Ins("s_memtime s[96:97]", 'other'))
    sa(f"s_cmp_eq_u32 s{sBLK}, 0")
    sa(f"s_cselect_b64 s[{SRDW}:{SRDW+1}], s[22:23], s[32:33]")
    sa(f"s_cselect_b64 s[{SRDX}:{SRDX+1}], s[16:17], s[26:27]")
    sa(f"s_cselect_b64 s[{SRDK}:{SRDK+1}], s[18:19], s[28:29]")
    sa(f"s_cselect_b64 s[{SRDV}:{SRDV+1}], s[20:21], s[30:31]")
    sa(f"s_cselect_b64 s[{SRDO}:{SRDO+1}], s[24:25], s[34:35]")
    sa(f"s_mov_b64 s[{SRDS}:{SRDS+1}], s[36:37]")
    for srd,n in ((SRDW,4194304),(SRDX,1966080),(SRDK,33554432),(SRDV,33554432),(SRDS,67108864),(SRDO,4194304)):
        sa(f"s_mov_b32 s{srd+2}, {n}"); sa(f"s_mov_b32 s{srd+3}, 0x20000")

    defer=[False]; dq=[]
    def grp(g):
        if defer[0]: dq.append(g)
        else:
            for x in g: add(x)
    def dma(srd, voff, sbase, goff, ldsoff, tag):
        if 'D' in cfg.ABL and tag not in (('W',0),('W',1)): return
        pol = cfg.KVPOL if tag[0] in 'KV' else cfg.WPOL
        grp([salu(f"s_add_u32 m0, s{sW1024}, {ldsoff}", S(sW1024), [M0]),
             salu(f"s_add_u32 s{sT}, s{sbase}, {goff}", S(sbase), S(sT)),
             Ins(f"buffer_load_dwordx4 v{voff}, s[{srd}:{srd+3}], s{sT} offen {pol} lds", 'dma', V(voff)+S(sT)+[M0], [], tag)])
    WSLOT=[6,7,8,9,4,5]
    OSLOT=[8,9,0,1,2,3,4,5,6,7]
    def dmaW(c):
        for h in range(2): dma(SRDW, vDW, sWB, (32*c+16*h)*8192, WSLOT[c%6]*16384+h*8192, ('W',c))
    def dmaK(j):
        for h in range(2): dma(SRDK, vDK, sKV, j*16384+h*8192, (j&3)*16384+h*8192, ('K',j))
    def dmaV(j):
        for h in range(2): dma(SRDV, vDV, sKV, j*16384+h*8192, (4+(j&3))*16384+h*8192, ('V',j))
    def dmaO(i):
        c=i>>2; kt=i&3
        for h in range(2): dma(SRDO, vDO, sWOB, (64*kt+32*h)*1024+c*256, OSLOT[i%10]*16384+h*8192, ('O',i))
    def ldx(s):
        for k in range(4):
            d=Q0+(s&3)*16+k*4
            grp([Ins(f"buffer_load_dwordx4 {vr(d,4)}, v{vDX}, s[{SRDX}:{SRDX+3}], s{sXOFF} offen offset:{(4*s+k)*32}",
                    'vmem_ld', V(vDX)+S(sXOFF), V(d,4))])
    dmaW(0); dmaW(1)
    if cfg.STAMP: add(Ins("s_memtime s[98:99]", 'other'))
    ldx(0)
    if cfg.STAMP: add(Ins("s_memtime s[100:101]", 'other'))
    if 'p' in cfg.ABL: defer[0]=True
    dmaW(2); dmaW(3); ldx(1); dmaW(4); dmaW(5); ldx(2)
    defer[0]=False
    if cfg.STAMP: add(Ins("s_memtime s[78:79]", 'other'))
    sa(f"s_lshl_b32 s4, s{sB}, 5"); sa(f"s_lshl_b32 s5, s{sHP}, 1"); sa("s_add_u32 s4, s4, s5")
    sa(f"s_lshl_b32 s{sKV}, s4, 17")
    sa(f"s_mov_b32 s{sFLAG}, 0")
    sa(f"s_mov_b32 s{sC}, {hex(f2u(math.log2(math.e)/math.sqrt(128.0)))}")
    sa(f"s_mov_b32 s{sTHR}, {hex(f2u(cfg.THR))}")
    sa(f"s_lshl_b32 s4, s{sBLK}, 3"); sa(f"s_add_u32 s4, s4, s{sB}"); sa("s_lshl_b32 s4, s4, 4")
    sa(f"s_add_u32 s4, s4, s{sHP}"); sa("s_lshl_b32 s4, s4, 3"); sa("s_add_u32 s4, s4, s3")
    sa(f"s_lshl_b32 s{sWSO}, s4, 15")
    sa(f"s_lshl_b32 s{sWOB}, s{sHP}, 18")
    va(f"v_lshrrev_b32 v{t2}, 4, v0", V(0), V(t2))
    va(f"v_lshl_add_u32 v{t3}, v{t0}, 2, v{t2}", V(t0)+V(t2), V(t3))
    va(f"v_and_b32 v{t5}, 15, v0", V(0), V(t5))
    va(f"v_xor_b32 v{vDK}, v{t3}, v{t5}", V(t3)+V(t5), V(vDK))
    va(f"v_and_b32 v{vDK}, 15, v{vDK}", V(vDK), V(vDK))
    va(f"v_lshlrev_b32 v{vDK}, 4, v{vDK}", V(vDK), V(vDK))
    va(f"v_lshl_add_u32 v{vDK}, v{t3}, 8, v{vDK}", V(t3)+V(vDK), V(vDK))
    va(f"v_lshlrev_b32 v{vDV}, 2, v{t2}", V(t2), V(vDV))
    va(f"v_xor_b32 v{vDV}, v{vDV}, v{t5}", V(vDV)+V(t5), V(vDV))
    va(f"v_lshlrev_b32 v{vDV}, 4, v{vDV}", V(vDV), V(vDV))
    va(f"v_lshl_add_u32 v{vRINV}, v{t3}, 10, v{vDV}", V(t3)+V(vDV), V(vRINV))
    va(f"v_lshl_add_u32 v{vDV}, v{t3}, 8, v{vDV}", V(t3)+V(vDV), V(vDV))
    va(f"v_bfe_u32 v{t2}, v0, 2, 2", V(0), V(t2))
    va(f"v_bfe_u32 v{t3}, v0, 4, 1", V(0), V(t3))
    va(f"v_and_b32 v{t5}, 1, v0", V(0), V(t5))
    va(f"v_lshl_add_u32 v{t3}, v{t3}, 1, v{t5}", V(t3)+V(t5), V(t3))
    va(f"v_lshlrev_b32 v{t3}, 4, v{t3}", V(t3), V(t3))
    va(f"v_bfe_u32 v{t5}, v0, 1, 1", V(0), V(t5))
    va(f"v_lshl_add_u32 v{t3}, v{t5}, 3, v{t3}", V(t3)+V(t5), V(t3))
    va(f"v_lshl_add_u32 v{t5}, v{t1}, 2, v{t2}", V(t1)+V(t2), V(t5))
    va(f"v_lshl_add_u32 v{t5}, v{t5}, 8, v{t3}", V(t5)+V(t3), V(t5))
    va(f"v_add_u32 v{t5}, 0x10000, v{t5}", V(t5), V(t5))
    for t in range(4):
        va(f"v_xor_b32 v{AV+t}, {t}, v{t2}", V(t2), V(AV+t))
        va(f"v_lshl_add_u32 v{AV+t}, v{AV+t}, 6, v{t5}", V(AV+t)+V(t5), V(AV+t))
    va(f"v_lshl_add_u32 v{t5}, v{t1}, 3, v{t2}", V(t1)+V(t2), V(t5))
    va(f"v_lshl_add_u32 v{t5}, v{t5}, 9, v{t3}", V(t5)+V(t3), V(t5))
    va(f"v_add_u32 v{t5}, 0x10000, v{t5}", V(t5), V(t5))
    for t in range(4):
        va(f"v_xor_b32 v{AW+t}, {t}, v{t2}", V(t2), V(AW+t))
        va(f"v_lshl_add_u32 v{AW+t}, v{AW+t}, 6, v{t5}", V(AW+t)+V(t5), V(AW+t))
        va(f"v_add_u32 v{AW+4+t}, 0x10000, v{AW+t}", V(AW+t), V(AW+4+t))
    va(f"v_and_b32 v{t5}, 15, v{t4}", V(t4), V(t5))
    va(f"v_xor_b32 v{t5}, v{t5}, v{t1}", V(t5)+V(t1), V(t5))
    va(f"v_lshlrev_b32 v{t5}, 4, v{t5}", V(t5), V(t5))
    va(f"v_lshl_add_u32 v{t5}, v{t4}, 8, v{t5}", V(t4)+V(t5), V(t5))
    for ks in range(8):
        va(f"v_xor_b32 v{AK+ks}, {ks<<5}, v{t5}", V(t5), V(AK+ks))
    va(f"v_lshlrev_b32 v{vST}, 4, v0", V(0), V(vST))
    if cfg.PRIO:
        sa(f"s_cmp_lt_u32 s3, 4"); add(Ins("s_cbranch_scc1 L_noprio",'branch')); add(Ins(f"s_setprio {cfg.PRIO}",'other')); add(Ins("L_noprio:",'label'))

    ops=[]; bp={}; ool=[]
    def QACC(t): return (SB+16*t) if t<4 else (O+16*(t-4))
    for s in range(8):
        for sp in range(4):
            c=2*s+(sp>>1); sl=WSLOT[c%6]
            for t in range(8):
                areg=AW+(t&3)+(4 if sl>=8 else 0)
                off=((sl-4) if sl<8 else (sl-8))*16384+(sp&1)*8192+(t>>2)*256
                xb=Q0+(s&3)*16+sp*4; first=(s==0 and sp==0)
                ops.append(dict(step=('p1',s),
                    reads=(lambda f,areg=areg,off=off:[ds_read_tr(f,areg,off),ds_read_tr(f+2,areg,off+2048)]),
                    m=(lambda f,t=t,xb=xb,first=first: mfma(QACC(t),f,xb,None if first else QACC(t))), valu=[]))
        def bpf(s=s):
            bar([('W',2*s+2),('W',2*s+3)] if s<7 else [('K',0)])
            if 2*s+6<=15: dmaW(2*s+6); dmaW(2*s+7)
            if s+3<=7: ldx(s+3)
            if 'k' in cfg.ABL:
                if s<4: dmaK(s)
                if s==5: dmaV(0); dmaV(1)
            else:
                if s==4: dmaK(0); dmaK(1)
                if s==5: dmaK(2); dmaV(0); dmaK(3); dmaV(1)
            if s==6: dmaV(2); dmaV(3)
            if s==7: va(f"v_mov_b32 v{vDO}, v{vRINV}", V(vRINV), V(vDO))
        bp[('p1',s)]=bpf
    def pack(dst, acc, scale=None):
        r=[]
        for tt in range(4):
            for h in range(2):
                b0=acc+16*tt+8*h
                if scale is not None:
                    for i in range(8):
                        r.append(valu(f"v_mul_f32 v{b0+i}, v{b0+i}, v{scale}", V(b0+i)+V(scale), V(b0+i)))
                for j in range(4):
                    a=b0+2*j; d=dst+(2*tt+h)*4+j
                    r.append(valu(f"v_cvt_pk_bf16_f32 v{d}, v{a}, v{a+1}", V(a,2), V(d)))
        return r
    def softmax(j):
        sb=SB+32*(j&1); r=[]
        A=[sb+i for i in range(16)]; B=[sb+16+i for i in range(16)]
        r.append(valu(f"v_max3_f32 v{vA2}, v{A[0]}, v{A[1]}, v{A[2]}", V(A[0],3), V(vA2)))
        for k in range(3,15,2): r.append(valu(f"v_max3_f32 v{vA2}, v{vA2}, v{A[k]}, v{A[k+1]}", V(vA2)+V(A[k],2), V(vA2)))
        r.append(valu(f"v_max3_f32 v{vB2}, v{B[0]}, v{B[1]}, v{B[2]}", V(B[0],3), V(vB2)))
        for k in range(3,15,2): r.append(valu(f"v_max3_f32 v{vB2}, v{vB2}, v{B[k]}, v{B[k+1]}", V(vB2)+V(B[k],2), V(vB2)))
        r.append(valu(f"v_max3_f32 v{vM}, v{vA2}, v{A[15]}, v{B[15]}", V(vA2)+V(A[15])+V(B[15]), V(vM)))
        r.append(valu(f"v_max_f32 v{vM}, v{vM}, v{vB2}", V(vM)+V(vB2), V(vM)))
        r.append(valu(f"v_mov_b32 v{vTm}, v{vM}", V(vM), V(vTm)))
        r.append(valu(f"v_permlane32_swap_b32 v{vM}, v{vTm}", V(vM)+V(vTm), V(vM)+V(vTm), 'perm'))
        r.append(valu(f"v_max_f32 v{vM}, v{vM}, v{vTm}", V(vM)+V(vTm), V(vM)))
        if j%8==0:
            r.append(valu(f"v_mul_f32 v{vMREF}, s{sC}, v{vM}", V(vM), V(vMREF)))
            r.append(valu(f"v_mov_b32 v{vL0}, 0", [], V(vL0)))
            r.append(valu(f"v_mov_b32 v{vL1}, 0", [], V(vL1)))
        else:
            r.append(valu(f"v_fma_f32 v{vTm}, v{vM}, s{sC}, -v{vMREF}", V(vM)+V(vMREF), V(vTm)))
            r.append(valu(f"v_cmp_lt_f32 vcc, s{sTHR}, v{vTm}", V(vTm), [('s','vcc')]))
            r.append(Ins(f"s_cbranch_vccnz L_rare1_{j}", 'branch'))
            r.append(Ins(f"L_back1_{j}:", 'label'))
            ool.append([f"L_rare1_{j}:", "    s_nop 4",
                f"    v_mul_f32 v{vTm}, s{sC}, v{vM}", f"    v_max_f32 v{vTm}, v{vTm}, v{vMREF}",
                f"    v_sub_f32 v{vALPHA}, v{vMREF}, v{vTm}", f"    v_exp_f32 v{vALPHA}, v{vALPHA}",
                f"    v_mov_b32 v{vMREF}, v{vTm}", "    s_nop 1",
                f"    v_mul_f32 v{vL0}, v{vL0}, v{vALPHA}", f"    v_mul_f32 v{vL1}, v{vL1}, v{vALPHA}",
                f"    s_mov_b32 s{sFLAG}, 1", "    s_nop 4", f"    s_branch L_back1_{j}"])
        for h in range(4):
            base=sb+8*h
            for i in range(8):
                x=base+i; r.append(valu(f"v_fma_f32 v{x}, v{x}, s{sC}, -v{vMREF}", V(x)+V(vMREF), V(x)))
            for i in range(8):
                x=base+i; r.append(valu(f"v_exp_f32 v{x}, v{x}", V(x), V(x), 'trans'))
            for i in range(8):
                x=base+i; L=vL0 if i%2==0 else vL1
                r.append(valu(f"v_add_f32 v{L}, v{L}, v{x}", V(L)+V(x), V(L)))
            for jj in range(4):
                r.append(valu(f"v_cvt_pk_bf16_f32 v{base+jj}, v{base+2*jj}, v{base+2*jj+1}", V(base+2*jj,2), V(base+jj)))
        if 'V' in cfg.ABL: r=[x for x in r if x.kind in ('branch','label')]
        if 'F' in cfg.ABL:
            r=[x for x in r if not (x.text.startswith('v_fma_f32') and 'v%d,'%vTm not in x.text.split()[1]) ]
            r=[x for x in r if not (x.text.startswith('v_add_f32 v%d'%vL1))]
        return r
    def rescale_check(j):
        ool.append([f"L_rare2_{j}:", "    s_nop 15", "    s_nop 7"]+
                   [f"    v_mul_f32 v{O+i}, v{O+i}, v{vALPHA}" for i in range(64)]+
                   [f"    s_mov_b32 s{sFLAG}, 0", "    s_nop 7", f"    s_branch L_back2_{j}"])
        return [Ins(f"s_cmp_lg_u32 s{sFLAG}, 0",'salu'), Ins(f"s_cbranch_scc1 L_rare2_{j}",'branch'), Ins(f"L_back2_{j}:",'label')]
    def finalize_l():
        return [valu(f"v_add_f32 v{t0}, v{vL0}, v{vL1}", V(vL0)+V(vL1), V(t0)),
                valu(f"v_mov_b32 v{t1}, v{t0}", V(t0), V(t1)),
                valu(f"v_permlane32_swap_b32 v{t0}, v{t1}", V(t0)+V(t1), V(t0)+V(t1), 'perm'),
                valu(f"v_add_f32 v{t0}, v{t0}, v{t1}", V(t0)+V(t1), V(t0)),
                valu(f"v_rcp_f32 v{vRINV}, v{t0}", V(t0), V(vRINV), 'trans')]
    def spread(vl, a, b, front=False):
        n=b-a; per=(len(vl)+n-1)//n; k=0
        for i in range(a,b):
            if front: ops[i]['valu']=vl[k:k+per]+ops[i]['valu']
            else: ops[i]['valu']+=vl[k:k+per]
            k+=per
    for j in range(-1,17):
        st=('p2',j); n0=len(ops)
        if 0<=j-1<=15:
            jj=j-1; pb=SB+32*(jj&1)
            for p in range(4):
                for t in range(4):
                    off=(jj&3)*16384+p*4096; first=(jj%8==0 and p==0)
                    ops.append(dict(step=st,
                        reads=(lambda f,t=t,off=off:[ds_read_tr(f,AV+t,off),ds_read_tr(f+2,AV+t,off+2048)]),
                        m=(lambda f,t=t,p=p,pb=pb,first=first: mfma(O+16*t,f,pb+8*p,None if first else O+16*t)), valu=[]))
        n1=len(ops)
        if j+1<=15:
            jj=j+1; sb=SB+32*(jj&1); Q=Q0 if jj<8 else Q1
            for kt,ks in ([(a,b) for a in range(2) for b in range(8)] if 'I' not in cfg.ABL else [(a,b) for b in range(8) for a in range(2)]):
                if True:
                    off=(jj&3)*16384+kt*8192
                    ops.append(dict(step=st,
                        reads=(lambda f,ks=ks,off=off:[ds_read_b128(f,AK+ks,off)]),
                        m=(lambda f,kt=kt,ks=ks,sb=sb,Q=Q: mfma(sb+16*kt,f,Q+4*ks,None if ks==0 else sb+16*kt)), valu=[]))
        n2=len(ops)
        vl=softmax(j) if 0<=j<=15 else []
        if j%8==7: vl=vl+finalize_l()
        if j==-1: vl=pack(Q1,O)
        if j==15:
            extra=[valu(f"v_lshrrev_b32 v{t2}, 9, v{vST}", V(vST), V(t2)),
                   valu(f"v_lshlrev_b32 v{t2}, 10, v{t2}", V(t2), V(t2))]
            for t in range(4):
                extra.append(valu(f"v_add_u32 v{AK+4+t}, v{AV+t}, v{t2}", V(AV+t)+V(t2), V(AK+4+t)))
                extra.append(valu(f"v_subrev_u32 v{AK+t}, 0x10000, v{AK+4+t}", V(AK+4+t), V(AK+t)))
            vl=vl+extra
        if vl: spread(vl,n0,n2)
        if 1<=j<=15 and j%8!=0:
            if n1<n2: ops[n1]['valu']=rescale_check(j)+ops[n1]['valu']
            else: ops[n1-1]['post']=rescale_check(j)
        if j==8: spread(pack(Q0,O,vRINV), n1, n2)
        def bpf(j=j):
            tags=[]
            if 0<=j<=15: tags.append(('V',j))
            if j+2<=15: tags.append(('K',j+2))
            if j==16: tags+= [('O',0),('O',1)]
            bar(tags)
            if 4<=j+cfg.KD<=15: dmaK(j+cfg.KD)
            if 4<=j+cfg.VD<=15: dmaV(j+cfg.VD)
            for i,jj in ((0,8),(1,9),(2,11),(3,12),(4,13),(5,14),(6,13),(7,14),(8,15),(9,16)):
                if jj==j: dmaO(i)
        bp[st]=bpf
    spread(pack(Q0,SB), 8*32-3, 8*32+1, front=True)
    def ACC3(c): return SB if c%2==0 else O
    def store3(c):
        r=[salu(f"s_add_u32 s{sST}, s{sWSO}, {c*8192}", S(sWSO), S(sST))]
        acc=ACC3(c)
        for t in range(4):
            for h in range(2):
                base=acc+16*t+8*h; k=2*t+h
                for jj in range(4):
                    r.append(valu(f"v_cvt_pk_bf16_f32 v{base+jj}, v{base+2*jj}, v{base+2*jj+1}", V(base+2*jj,2), V(base+jj)))
                r.append(Ins(f"buffer_store_dwordx4 {vr(base,4)}, v{vST}, s[{SRDS}:{SRDS+3}], s{sST} offen offset:{(k&3)*1024} {cfg.STPOL}",
                             'vmem_st', V(base,4)+V(vST)+S(sST), []))
                if k==3: r.append(salu(f"s_add_u32 s{sST}, s{sWSO}, {c*8192+4096}", S(sWSO), S(sST)))
        return r
    p3start=len(ops)
    for q in range(8):
        st=('p3',q); n0=len(ops)
        for i in (2*q,2*q+1):
            c=i>>2; kt=i&3; sl=OSLOT[i%10]
            for p in range(4):
                for t in range(4):
                    if sl<4: areg=AK+t; off=sl*16384
                    elif sl<8: areg=AK+4+t; off=(sl-4)*16384
                    else: areg=AK+4+t; off=(sl-4)*16384
                    off+=p*4096
                    bb=(Q0+4*(4*kt+p)) if kt<2 else (Q1+4*(4*(kt-2)+p))
                    first=(kt==0 and p==0); acc=ACC3(c)+16*t
                    if sl>=8:
                        areg=('C',t); off=(sl-8)*16384+p*4096
                    ops.append(dict(step=st, areg=areg,
                        reads=(lambda f,areg=areg,off=off:[ds_read_tr(f,A3(areg),off),ds_read_tr(f+2,A3(areg),off+1024)]),
                        m=(lambda f,bb=bb,acc=acc,first=first: mfma(acc,f,bb,None if first else acc)), valu=[]))
        n2=len(ops)
        if q==0: spread(pack(Q1,O,vRINV), n0+2, n2-4)
        if q>=2 and q%2==0: spread(store3(q//2-1), n0+2, n0+20)
        def bpf(q=q):
            bar([('O',2*q+2),('O',2*q+3)])
            if 2*q+10<=15: dmaO(2*q+10); dmaO(2*q+11)
        bp[st]=bpf
    ops[-1]['post']=store3(3)
    C3=[t2,t3,t4,t5] if not cfg.STAMP else [t2,vM,vA2,vB2]
    def A3(a): return C3[a[1]] if isinstance(a,tuple) else a
    idx=[i for i,o in enumerate(ops) if o['step']==('p2',16)][0]
    for t in range(4):
        ops[idx]['valu'].append(valu(f"v_add_u32 v{C3[t]}, 0x10000, v{AK+4+t}", V(AK+4+t), V(C3[t])))

    N=len(ops)
    bar([('W',0),('W',1)])
    if cfg.STAMP:
        for k,sg in enumerate((96,98,100,78)): add(Ins(f"v_writelane_b32 v254, s{sg}, {50+k}", 'valu', [], V(254)))
    def fr(i): return FR+4*(i%NF)
    for i in range(D):
        for r in ops[i]['reads'](fr(i)): add(r)
    if cfg.GAP==0:
        while dq:
            for x in dq.pop(0): add(x)
    defer[0]=cfg.GAP>0 or cfg.STAG>0
    cnt=cfg.GAP; late=[]; lcount=[0]; lab=[0]
    def emit_guarded(groups, half, tracked):
        if not groups: return
        lab[0]+=1; L=f"L_stg{lab[0]}"
        add(salu(f"s_cmp_{'ge' if half==0 else 'lt'}_u32 s3, 4")); add(Ins(f"s_cbranch_scc1 {L}",'branch'))
        for g in groups:
            for x in g:
                if tracked or x.kind=='salu': add(x)
                else: add(Ins(x.text,'dmau' if x.kind=='dma' else 'other',x.rd,[]))
        add(Ins(f"{L}:",'label'))
    for i in range(N):
        if i+D<N:
            if ops[i+D]['step']!=ops[i+D-1]['step']:
                if late: emit_guarded(late,1,True); late=[]
                while dq:
                    for x in dq.pop(0): add(x)
                bp[ops[i+D-1]['step']](); cnt=cfg.GAP-1
                if cfg.STAG>0:
                    late=list(dq); dq.clear(); emit_guarded(late,0,False); lcount[0]=0
            for r in ops[i+D]['reads'](fr(i+D)): add(r)
        if late:
            lcount[0]+=1
            if lcount[0]>=cfg.STAG: emit_guarded(late,1,True); late=[]
        cnt+=1
        if dq and cnt>=cfg.GAP:
            for x in dq.pop(0): add(x)
            cnt=0
        for v in ops[i]['valu']: add(v)
        add(ops[i]['m'](fr(i)))
        for v in ops[i].get('post',[]): add(v)
    if cfg.STAMP:
        add(Ins("s_memtime s[80:81]", 'other')); add(Ins("s_memrealtime s[92:93]", 'other')); add(Ins("s_waitcnt lgkmcnt(0)", 'wait'))
        add(Ins(f"v_writelane_b32 v254, s86, 62", 'valu', [], V(254)))
        add(Ins(f"v_writelane_b32 v254, s92, 61", 'valu', [], V(254)))
        i=stamp_idx[0]
        add(Ins(f"v_writelane_b32 v255, s80, {i}", 'valu', [], V(255)))
        add(Ins(f"v_writelane_b32 v254, s82, {i-1}", 'valu', [], V(254)))
        add(Ins(f"v_writelane_b32 v254, s84, 63", 'valu', [], V(254)))
        add(salu("s_lshl_b32 s4, s2, 13")); add(salu(f"s_add_u32 s4, s4, s{sW1024}")); add(salu("s_add_u32 s4, s4, 0x4000000"))
        add(salu(f"s_mov_b32 s{SRDS+2}, 0x10000000"))
        add(Ins(f"v_lshrrev_b32 v{vST}, 2, v{vST}", 'valu', V(vST), V(vST)))
        add(Ins(f"buffer_store_dword v255, v{vST}, s[{SRDS}:{SRDS+3}], s4 offen", 'vmem_st', V(255)+V(vST), []))
        add(Ins(f"buffer_store_dword v254, v{vST}, s[{SRDS}:{SRDS+3}], s4 offen offset:256", 'vmem_st', V(254)+V(vST), []))
        add(Ins(f"buffer_store_dword v253, v{vST}, s[{SRDS}:{SRDS+3}], s4 offen offset:512", 'vmem_st', V(253)+V(vST), []))
    body=render(finalize(P))
    return body+"L_k1_end:\n    s_endpgm\n"+"\n".join("\n".join(b) for b in ool)+"\n"

def gen_k2():
    P=[]; add=P.append
    def sa(t, rd=(), wr=()): add(salu(t, rd, wr))
    def va(t, rd=(), wr=(), kind='valu'): add(valu(t, rd, wr, kind))
    add(Ins("s_cmp_ge_u32 s2, 1024", 'salu')); add(Ins("s_cbranch_scc1 L_k2_end", 'branch'))
    if 'h' in cfg.ABL:
        add(Ins("s_bitcmp1_b32 s2, 8", 'salu')); add(Ins("s_cbranch_scc1 L_k2_end", 'branch'))
    add(Ins("s_load_dwordx2 s[4:5], s[0:1], 80", 'other'))
    add(Ins("s_load_dwordx2 s[8:9], s[0:1], 96", 'other'))
    if cfg.MAP==0:
        sa("s_lshr_b32 s12, s2, 6")
        sa("s_bfe_u32 s13, s2, 0x30003")
        sa("s_and_b32 s14, s2, 7")
    else:
        sa("s_and_b32 s12, s2, 7"); sa("s_lshl_b32 s12, s12, 1"); sa("s_lshr_b32 s13, s2, 9"); sa("s_add_u32 s12, s12, s13")
        sa("s_bfe_u32 s13, s2, 0x30003")
        sa("s_bfe_u32 s14, s2, 0x30006"); sa("s_sub_u32 s14, 7, s14")
    sa("s_lshl_b32 s15, s12, 22"); sa("s_lshl_b32 s16, s13, 15"); sa("s_add_u32 s15, s15, s16")
    sa("s_lshl_b32 s16, s14, 12"); sa("s_add_u32 s15, s15, s16")
    va("v_lshlrev_b32 v1, 4, v0", V(0), V(1))
    va("v_and_b32 v2, 31, v0", V(0), V(2))
    sa("s_lshl_b32 s16, s13, 5")
    va("v_add_u32 v2, s16, v2", V(2), V(2))
    va("v_mov_b32 v6, 0x40000000", [], V(6))
    va("v_cmp_gt_u32 vcc, 240, v2", V(2), [('s','vcc')])
    add(Ins("s_waitcnt lgkmcnt(0)", 'wait'))
    sa("s_mov_b32 s6, 3932160"); sa("s_mov_b32 s7, 0x20000"); sa("s_mov_b32 s10, 67108864"); sa("s_mov_b32 s11, 0x20000")
    va("v_cndmask_b32 v1, v6, v1, vcc", V(1)+V(6), V(1))
    for hp in range(16):
        add(Ins(f"buffer_load_dwordx4 {vr(8+4*hp,4)}, v1, s[8:11], s15 offen {cfg.RPOL}", 'vmem_ld', V(1), V(8+4*hp,4)))
        if hp<15: sa("s_add_u32 s15, s15, 0x40000")
    va("v_bfe_u32 v3, v0, 5, 1", V(0), V(3))
    va("v_lshrrev_b32 v4, 6, v0", V(0), V(4))
    va("v_lshlrev_b32 v5, 11, v2", V(2), V(5))
    va("v_lshl_add_u32 v5, v4, 5, v5", V(4)+V(5), V(5))
    va("v_lshl_add_u32 v5, v3, 4, v5", V(3)+V(5), V(5))
    sa("s_and_b32 s16, s12, 7"); sa("s_mul_i32 s16, s16, 491520")
    sa("s_lshr_b32 s17, s12, 3"); sa("s_lshl_b32 s17, s17, 10"); sa("s_add_u32 s16, s16, s17")
    sa("s_lshl_b32 s17, s14, 7"); sa("s_add_u32 s16, s16, s17")
    va("v_cndmask_b32 v5, v6, v5, vcc", V(5)+V(6), V(5))
    A=72
    for hp in range(16):
        for i in range(4):
            x=8+4*hp+i
            if hp==0:
                va(f"v_lshlrev_b32 v{A+2*i}, 16, v{x}", V(x), V(A+2*i))
                va(f"v_and_b32 v{A+2*i+1}, 0xffff0000, v{x}", V(x), V(A+2*i+1))
            else:
                va(f"v_lshlrev_b32 v{80}, 16, v{x}", V(x), V(80))
                va(f"v_and_b32 v{81}, 0xffff0000, v{x}", V(x), V(81))
                va(f"v_add_f32 v{A+2*i}, v{A+2*i}, v80", V(A+2*i)+V(80), V(A+2*i))
                va(f"v_add_f32 v{A+2*i+1}, v{A+2*i+1}, v81", V(A+2*i+1)+V(81), V(A+2*i+1))
    for i in range(4):
        va(f"v_cvt_pk_bf16_f32 v{84+i}, v{A+2*i}, v{A+2*i+1}", V(A+2*i,2), V(84+i))
    add(Ins("buffer_store_dwordx4 v[84:87], v5, s[4:7], s16 offen", 'vmem_st', V(84,4)+V(5), []))
    return render(finalize(P))+"L_k2_end:\n    s_endpgm\n"

HEAD = open("cdna_kernels/"+NAME+".s.ref").read().split("; Override launch")[0]
def kd(name, vgpr, sgpr=102):
    return f""".amdhsa_kernel {name}
  .amdhsa_next_free_vgpr {vgpr}
  .amdhsa_next_free_sgpr {sgpr}
  .amdhsa_accum_offset {vgpr}
  .amdhsa_group_segment_fixed_size 0
  .amdhsa_kernarg_size 104
  .amdhsa_user_sgpr_count 2
  .amdhsa_user_sgpr_kernarg_segment_ptr 1
  .amdhsa_system_sgpr_workgroup_id_x 1
.end_amdhsa_kernel
"""
def build():
    s=HEAD
    s+="; @launch kernel=attn_kernel grid=(256,1,1) block=(512,1,1) lds=163840\n"
    s+="; @launch kernel=reduce_kernel grid=(1024,1,1) block=(256,1,1) lds=0\n"
    s+='.amdgcn_target "amdgcn-amd-amdhsa--gfx950"\n.text\n'
    s+=".globl attn_kernel\n.p2align 8\n.type attn_kernel,@function\nattn_kernel:\n"+gen_k1()
    s+=".globl reduce_kernel\n.p2align 8\n.type reduce_kernel,@function\nreduce_kernel:\n"+gen_k2()
    s+='.section .rodata,"a"\n.p2align 6\n'+kd("attn_kernel",256)+".p2align 6\n"+kd("reduce_kernel",88,32)
    return s
if __name__=="__main__":
    out=sys.argv[1]
    for a in sys.argv[2:]:
        k,_,v=a.partition("=")
        if k=="stamp": cfg.STAMP=True
        elif k in ("D","PRIO","GAP","KD","VD","MAP","STAG"): setattr(cfg,k,int(v))
        else: setattr(cfg,k,v.replace("+"," "))
    open(out,"w").write(build()); print("wrote",out)
```

```python
import sys, math, os, struct
sys.path.insert(0, "dev")
from asmlib import *

NAME = "concat_heads__mha_block_cached__gqa_block_cached__near_ridge"
M0 = ('s','m0')
f2u = lambda f: struct.unpack('<I', struct.pack('<f', f))[0]

class Cfg:
    STAMP=False; KVPOL='sc1 nt'; WPOL=''; D=6; THR=8.0; ABL=''; STPOL=''; PRIO=0; RPOL=''; GAP=0; STAG=0; MAP=0; KD=5; VD=3
cfg=Cfg()

def gen_k1():
    D=cfg.D; NF=D+2
    P=[]; add=P.append
    def sa(t, rd=(), wr=()): add(salu(t, rd, wr))
    def va(t, rd=(), wr=(), kind='valu'): add(valu(t, rd, wr, kind))
    stamp_idx=[0]
    def bar(tags):
        if cfg.STAMP: add(Ins("s_memtime s[80:81]", 'other')); add(Ins("s_memrealtime s[94:95]", 'other'))
        add(Ins("", 'waittag', meta=(tags, True)))
        if cfg.STAMP:
            i=stamp_idx[0]
            if i>0: add(Ins(f"v_writelane_b32 v253, s94, {i}", 'valu', [], V(253)))
            add(Ins(f"v_writelane_b32 v255, s80, {i}", 'valu', [], V(255)))
            if i>0: add(Ins(f"v_writelane_b32 v254, s82, {i-1}", 'valu', [], V(254)))
            stamp_idx[0]+=1
        if 'B' not in cfg.ABL: add(Ins("s_barrier", 'barrier'))
        if cfg.STAMP: add(Ins("s_memtime s[82:83]", 'other'))
    sBLK,sB,sHP,sW1024,sXOFF,sKV,sWB,sT,sFLAG,sC,sTHR,sWSO,sST,sWOB = range(64,78)
    SRDX,SRDK,SRDV,SRDW,SRDS,SRDO = 44,48,52,56,60,88
    O=0; Q0=64; Q1=96; SB=128; FR=192; AK=224; AV=232
    vDK,vDV=236,237
    vM,vTm,vMREF,vL0,vL1,vALPHA,vA2,vB2 = range(238,246)
    AW=238
    vST,vDW,vDX,vRINV = 246,247,248,249
    vDO = vDW
    t0,t1,t2,t3,t4,t5 = range(250,256)
    if cfg.STAMP: A3C=[196+NF*4-4]*4
    assert FR+4*NF <= AK

    add(Ins("s_cmp_ge_u32 s2, 256", 'salu'))
    add(Ins("s_cbranch_scc1 L_k1_end", 'branch'))
    if cfg.STAMP: add(Ins("s_memtime s[84:85]", 'other')); add(Ins("s_memrealtime s[86:87]", 'other'))
    add(Ins("s_load_dwordx16 s[16:31], s[0:1], 0", 'other'))
    add(Ins("s_load_dwordx4 s[32:35], s[0:1], 64", 'other'))
    add(Ins("s_load_dwordx2 s[36:37], s[0:1], 96", 'other'))
    if cfg.MAP==0:
        sa("s_and_b32 s3, s2, 7"); sa("s_lshr_b32 s4, s2, 3"); sa(f"s_lshr_b32 s{sBLK}, s3, 2")
        sa("s_and_b32 s3, s3, 3"); sa("s_lshl_b32 s3, s3, 2"); sa("s_and_b32 s5, s4, 3")
        sa(f"s_add_u32 s{sHP}, s3, s5"); sa(f"s_lshr_b32 s{sB}, s4, 2")
    else:
        sa("s_and_b32 s3, s2, 7"); sa("s_lshr_b32 s4, s2, 3"); sa(f"s_lshr_b32 s{sBLK}, s3, 2")
        sa("s_and_b32 s3, s3, 3"); sa("s_lshl_b32 s3, s3, 1"); sa("s_lshr_b32 s5, s4, 4")
        sa(f"s_add_u32 s{sB}, s3, s5"); sa(f"s_and_b32 s{sHP}, s4, 15")
    va(f"v_lshrrev_b32 v{t0}, 6, v0", V(0), V(t0))
    va(f"v_and_b32 v0, 63, v0", V(0), V(0))
    va(f"v_readfirstlane_b32 s3, v{t0}", V(t0), S(3))
    va(f"v_lshrrev_b32 v{t1}, 5, v0", V(0), V(t1))
    va(f"v_lshl_add_u32 v{t2}, v{t0}, 1, v{t1}", V(t0)+V(t1), V(t2))
    va(f"v_and_b32 v{t3}, 3, v{t2}", V(t2), V(t3))
    va(f"v_lshlrev_b32 v{t3}, 2, v{t3}", V(t3), V(t3))
    va(f"v_and_b32 v{t4}, 31, v0", V(0), V(t4))
    va(f"v_xor_b32 v{t3}, v{t3}, v{t4}", V(t3)+V(t4), V(t3))
    va(f"v_lshlrev_b32 v{t3}, 4, v{t3}", V(t3), V(t3))
    va(f"v_lshl_add_u32 v{vDW}, v{t2}, 13, v{t3}", V(t2)+V(t3), V(vDW))
    va(f"v_lshl_add_u32 v{t2}, v{t0}, 5, v{t4}", V(t0)+V(t4), V(t2))
    va(f"v_lshlrev_b32 v{t3}, 4, v{t1}", V(t1), V(t3))
    va(f"v_lshl_add_u32 v{vDX}, v{t2}, 10, v{t3}", V(t2)+V(t3), V(vDX))
    if 'z' in cfg.ABL:
        va(f"v_mov_b32 v{t3}, 0x40000000", [], V(t3))
        va(f"v_cmp_gt_u32 vcc, 240, v{t2}", V(t2), [('s','vcc')])
        add(Ins("s_nop 1",'nop'))
        va(f"v_cndmask_b32 v{vDX}, v{t3}, v{vDX}, vcc", V(t3)+V(vDX), V(vDX))
    sa(f"s_lshl_b32 s{sW1024}, s3, 10", S(3))
    sa(f"s_mul_i32 s{sXOFF}, s{sB}, 245760")
    sa(f"s_lshl_b32 s{sWB}, s{sHP}, 9")
    add(Ins("s_waitcnt lgkmcnt(0)", 'wait'))
    if cfg.STAMP: add(Ins("s_memtime s[96:97]", 'other'))
    sa(f"s_cmp_eq_u32 s{sBLK}, 0")
    sa(f"s_cselect_b64 s[{SRDW}:{SRDW+1}], s[22:23], s[32:33]")
    sa(f"s_cselect_b64 s[{SRDX}:{SRDX+1}], s[16:17], s[26:27]")
    sa(f"s_cselect_b64 s[{SRDK}:{SRDK+1}], s[18:19], s[28:29]")
    sa(f"s_cselect_b64 s[{SRDV}:{SRDV+1}], s[20:21], s[30:31]")
    sa(f"s_cselect_b64 s[{SRDO}:{SRDO+1}], s[24:25], s[34:35]")
    sa(f"s_mov_b64 s[{SRDS}:{SRDS+1}], s[36:37]")
    for srd,n in ((SRDW,4194304),(SRDX,1966080),(SRDK,33554432),(SRDV,33554432),(SRDS,67108864),(SRDO,4194304)):
        sa(f"s_mov_b32 s{srd+2}, {n}"); sa(f"s_mov_b32 s{srd+3}, 0x20000")

    defer=[False]; dq=[]
    def grp(g):
        if defer[0]: dq.append(g)
        else:
            for x in g: add(x)
    def dma(srd, voff, sbase, goff, ldsoff, tag):
        if 'D' in cfg.ABL and tag not in (('W',0),('W',1)): return
        pol = cfg.KVPOL if tag[0] in 'KV' else cfg.WPOL
        grp([salu(f"s_add_u32 m0, s{sW1024}, {ldsoff}", S(sW1024), [M0]),
             salu(f"s_add_u32 s{sT}, s{sbase}, {goff}", S(sbase), S(sT)),
             Ins(f"buffer_load_dwordx4 v{voff}, s[{srd}:{srd+3}], s{sT} offen {pol} lds", 'dma', V(voff)+S(sT)+[M0], [], tag)])
    WSLOT=[6,7,8,9,4,5]
    OSLOT=[8,9,0,1,2,3,4,5,6,7]
    def dmaW(c):
        for h in range(2): dma(SRDW, vDW, sWB, (32*c+16*h)*8192, WSLOT[c%6]*16384+h*8192, ('W',c))
    def dmaK(j):
        for h in range(2): dma(SRDK, vDK, sKV, j*16384+h*8192, (j&3)*16384+h*8192, ('K',j))
    def dmaV(j):
        for h in range(2): dma(SRDV, vDV, sKV, j*16384+h*8192, (4+(j&3))*16384+h*8192, ('V',j))
    def dmaO(i):
        c=i>>2; kt=i&3
        for h in range(2): dma(SRDO, vDO, sWOB, (64*kt+32*h)*1024+c*256, OSLOT[i%10]*16384+h*8192, ('O',i))
    def ldx(s):
        for k in range(4):
            d=Q0+(s&3)*16+k*4
            grp([Ins(f"buffer_load_dwordx4 {vr(d,4)}, v{vDX}, s[{SRDX}:{SRDX+3}], s{sXOFF} offen offset:{(4*s+k)*32}",
                    'vmem_ld', V(vDX)+S(sXOFF), V(d,4))])
    dmaW(0); dmaW(1)
    if cfg.STAMP: add(Ins("s_memtime s[98:99]", 'other'))
    ldx(0)
    if cfg.STAMP: add(Ins("s_memtime s[100:101]", 'other'))
    if 'p' in cfg.ABL: defer[0]=True
    dmaW(2); dmaW(3); ldx(1); dmaW(4); dmaW(5); ldx(2)
    defer[0]=False
    if cfg.STAMP: add(Ins("s_memtime s[78:79]", 'other'))
    sa(f"s_lshl_b32 s4, s{sB}, 5"); sa(f"s_lshl_b32 s5, s{sHP}, 1"); sa("s_add_u32 s4, s4, s5")
    sa(f"s_lshl_b32 s{sKV}, s4, 17")
    sa(f"s_mov_b32 s{sFLAG}, 0")
    sa(f"s_mov_b32 s{sC}, {hex(f2u(math.log2(math.e)/math.sqrt(128.0)))}")
    sa(f"s_mov_b32 s{sTHR}, {hex(f2u(cfg.THR))}")
    sa(f"s_lshl_b32 s4, s{sBLK}, 3"); sa(f"s_add_u32 s4, s4, s{sB}"); sa("s_lshl_b32 s4, s4, 4")
    sa(f"s_add_u32 s4, s4, s{sHP}"); sa("s_lshl_b32 s4, s4, 3"); sa("s_add_u32 s4, s4, s3")
    sa(f"s_lshl_b32 s{sWSO}, s4, 15")
    sa(f"s_lshl_b32 s{sWOB}, s{sHP}, 18")
    va(f"v_lshrrev_b32 v{t2}, 4, v0", V(0), V(t2))
    va(f"v_lshl_add_u32 v{t3}, v{t0}, 2, v{t2}", V(t0)+V(t2), V(t3))
    va(f"v_and_b32 v{t5}, 15, v0", V(0), V(t5))
    va(f"v_xor_b32 v{vDK}, v{t3}, v{t5}", V(t3)+V(t5), V(vDK))
    va(f"v_and_b32 v{vDK}, 15, v{vDK}", V(vDK), V(vDK))
    va(f"v_lshlrev_b32 v{vDK}, 4, v{vDK}", V(vDK), V(vDK))
    va(f"v_lshl_add_u32 v{vDK}, v{t3}, 8, v{vDK}", V(t3)+V(vDK), V(vDK))
    va(f"v_lshlrev_b32 v{vDV}, 2, v{t2}", V(t2), V(vDV))
    va(f"v_xor_b32 v{vDV}, v{vDV}, v{t5}", V(vDV)+V(t5), V(vDV))
    va(f"v_lshlrev_b32 v{vDV}, 4, v{vDV}", V(vDV), V(vDV))
    va(f"v_lshl_add_u32 v{vRINV}, v{t3}, 10, v{vDV}", V(t3)+V(vDV), V(vRINV))
    va(f"v_lshl_add_u32 v{vDV}, v{t3}, 8, v{vDV}", V(t3)+V(vDV), V(vDV))
    va(f"v_bfe_u32 v{t2}, v0, 2, 2", V(0), V(t2))
    va(f"v_bfe_u32 v{t3}, v0, 4, 1", V(0), V(t3))
    va(f"v_and_b32 v{t5}, 1, v0", V(0), V(t5))
    va(f"v_lshl_add_u32 v{t3}, v{t3}, 1, v{t5}", V(t3)+V(t5), V(t3))
    va(f"v_lshlrev_b32 v{t3}, 4, v{t3}", V(t3), V(t3))
    va(f"v_bfe_u32 v{t5}, v0, 1, 1", V(0), V(t5))
    va(f"v_lshl_add_u32 v{t3}, v{t5}, 3, v{t3}", V(t3)+V(t5), V(t3))
    va(f"v_lshl_add_u32 v{t5}, v{t1}, 2, v{t2}", V(t1)+V(t2), V(t5))
    va(f"v_lshl_add_u32 v{t5}, v{t5}, 8, v{t3}", V(t5)+V(t3), V(t5))
    va(f"v_add_u32 v{t5}, 0x10000, v{t5}", V(t5), V(t5))
    for t in range(4):
        va(f"v_xor_b32 v{AV+t}, {t}, v{t2}", V(t2), V(AV+t))
        va(f"v_lshl_add_u32 v{AV+t}, v{AV+t}, 6, v{t5}", V(AV+t)+V(t5), V(AV+t))
    va(f"v_lshl_add_u32 v{t5}, v{t1}, 3, v{t2}", V(t1)+V(t2), V(t5))
    va(f"v_lshl_add_u32 v{t5}, v{t5}, 9, v{t3}", V(t5)+V(t3), V(t5))
    va(f"v_add_u32 v{t5}, 0x10000, v{t5}", V(t5), V(t5))
    for t in range(4):
        va(f"v_xor_b32 v{AW+t}, {t}, v{t2}", V(t2), V(AW+t))
        va(f"v_lshl_add_u32 v{AW+t}, v{AW+t}, 6, v{t5}", V(AW+t)+V(t5), V(AW+t))
        va(f"v_add_u32 v{AW+4+t}, 0x10000, v{AW+t}", V(AW+t), V(AW+4+t))
    va(f"v_and_b32 v{t5}, 15, v{t4}", V(t4), V(t5))
    va(f"v_xor_b32 v{t5}, v{t5}, v{t1}", V(t5)+V(t1), V(t5))
    va(f"v_lshlrev_b32 v{t5}, 4, v{t5}", V(t5), V(t5))
    va(f"v_lshl_add_u32 v{t5}, v{t4}, 8, v{t5}", V(t4)+V(t5), V(t5))
    for ks in range(8):
        va(f"v_xor_b32 v{AK+ks}, {ks<<5}, v{t5}", V(t5), V(AK+ks))
    va(f"v_lshlrev_b32 v{vST}, 4, v0", V(0), V(vST))
    if cfg.PRIO:
        sa(f"s_cmp_lt_u32 s3, 4"); add(Ins("s_cbranch_scc1 L_noprio",'branch')); add(Ins(f"s_setprio {cfg.PRIO}",'other')); add(Ins("L_noprio:",'label'))

    ops=[]; bp={}; ool=[]
    def QACC(t): return (SB+16*t) if t<4 else (O+16*(t-4))
    for s in range(8):
        for sp in range(4):
            c=2*s+(sp>>1); sl=WSLOT[c%6]
            for t in range(8):
                areg=AW+(t&3)+(4 if sl>=8 else 0)
                off=((sl-4) if sl<8 else (sl-8))*16384+(sp&1)*8192+(t>>2)*256
                xb=Q0+(s&3)*16+sp*4; first=(s==0 and sp==0)
                ops.append(dict(step=('p1',s),
                    reads=(lambda f,areg=areg,off=off:[ds_read_tr(f,areg,off),ds_read_tr(f+2,areg,off+2048)]),
                    m=(lambda f,t=t,xb=xb,first=first: mfma(QACC(t),f,xb,None if first else QACC(t))), valu=[]))
        def bpf(s=s):
            bar([('W',2*s+2),('W',2*s+3)] if s<7 else [('K',0)])
            if 2*s+6<=15: dmaW(2*s+6); dmaW(2*s+7)
            if s+3<=7: ldx(s+3)
            if 'k' in cfg.ABL:
                if s<4: dmaK(s)
                if s==5: dmaV(0); dmaV(1)
            else:
                if s==4: dmaK(0); dmaK(1)
                if s==5: dmaK(2); dmaV(0); dmaK(3); dmaV(1)
            if s==6: dmaV(2); dmaV(3)
            if s==7: va(f"v_mov_b32 v{vDO}, v{vRINV}", V(vRINV), V(vDO))
        bp[('p1',s)]=bpf
    def pack(dst, acc, scale=None):
        r=[]
        for tt in range(4):
            for h in range(2):
                b0=acc+16*tt+8*h
                if scale is not None:
                    for i in range(8):
                        r.append(valu(f"v_mul_f32 v{b0+i}, v{b0+i}, v{scale}", V(b0+i)+V(scale), V(b0+i)))
                for j in range(4):
                    a=b0+2*j; d=dst+(2*tt+h)*4+j
                    r.append(valu(f"v_cvt_pk_bf16_f32 v{d}, v{a}, v{a+1}", V(a,2), V(d)))
        return r
    def softmax(j):
        sb=SB+32*(j&1); r=[]
        A=[sb+i for i in range(16)]; B=[sb+16+i for i in range(16)]
        r.append(valu(f"v_max3_f32 v{vA2}, v{A[0]}, v{A[1]}, v{A[2]}", V(A[0],3), V(vA2)))
        for k in range(3,15,2): r.append(valu(f"v_max3_f32 v{vA2}, v{vA2}, v{A[k]}, v{A[k+1]}", V(vA2)+V(A[k],2), V(vA2)))
        r.append(valu(f"v_max3_f32 v{vB2}, v{B[0]}, v{B[1]}, v{B[2]}", V(B[0],3), V(vB2)))
        for k in range(3,15,2): r.append(valu(f"v_max3_f32 v{vB2}, v{vB2}, v{B[k]}, v{B[k+1]}", V(vB2)+V(B[k],2), V(vB2)))
        r.append(valu(f"v_max3_f32 v{vM}, v{vA2}, v{A[15]}, v{B[15]}", V(vA2)+V(A[15])+V(B[15]), V(vM)))
        r.append(valu(f"v_max_f32 v{vM}, v{vM}, v{vB2}", V(vM)+V(vB2), V(vM)))
        r.append(valu(f"v_mov_b32 v{vTm}, v{vM}", V(vM), V(vTm)))
        r.append(valu(f"v_permlane32_swap_b32 v{vM}, v{vTm}", V(vM)+V(vTm), V(vM)+V(vTm), 'perm'))
        r.append(valu(f"v_max_f32 v{vM}, v{vM}, v{vTm}", V(vM)+V(vTm), V(vM)))
        if j%8==0:
            r.append(valu(f"v_mul_f32 v{vMREF}, s{sC}, v{vM}", V(vM), V(vMREF)))
            r.append(valu(f"v_mov_b32 v{vL0}, 0", [], V(vL0)))
            r.append(valu(f"v_mov_b32 v{vL1}, 0", [], V(vL1)))
        else:
            r.append(valu(f"v_fma_f32 v{vTm}, v{vM}, s{sC}, -v{vMREF}", V(vM)+V(vMREF), V(vTm)))
            r.append(valu(f"v_cmp_lt_f32 vcc, s{sTHR}, v{vTm}", V(vTm), [('s','vcc')]))
            r.append(Ins(f"s_cbranch_vccnz L_rare1_{j}", 'branch'))
            r.append(Ins(f"L_back1_{j}:", 'label'))
            ool.append([f"L_rare1_{j}:", "    s_nop 4",
                f"    v_mul_f32 v{vTm}, s{sC}, v{vM}", f"    v_max_f32 v{vTm}, v{vTm}, v{vMREF}",
                f"    v_sub_f32 v{vALPHA}, v{vMREF}, v{vTm}", f"    v_exp_f32 v{vALPHA}, v{vALPHA}",
                f"    v_mov_b32 v{vMREF}, v{vTm}", "    s_nop 1",
                f"    v_mul_f32 v{vL0}, v{vL0}, v{vALPHA}", f"    v_mul_f32 v{vL1}, v{vL1}, v{vALPHA}",
                f"    s_mov_b32 s{sFLAG}, 1", "    s_nop 4", f"    s_branch L_back1_{j}"])
        for h in range(4):
            base=sb+8*h
            for i in range(8):
                x=base+i; r.append(valu(f"v_fma_f32 v{x}, v{x}, s{sC}, -v{vMREF}", V(x)+V(vMREF), V(x)))
            for i in range(8):
                x=base+i; r.append(valu(f"v_exp_f32 v{x}, v{x}", V(x), V(x), 'trans'))
            for i in range(8):
                x=base+i; L=vL0 if i%2==0 else vL1
                r.append(valu(f"v_add_f32 v{L}, v{L}, v{x}", V(L)+V(x), V(L)))
            for jj in range(4):
                r.append(valu(f"v_cvt_pk_bf16_f32 v{base+jj}, v{base+2*jj}, v{base+2*jj+1}", V(base+2*jj,2), V(base+jj)))
        if 'V' in cfg.ABL: r=[x for x in r if x.kind in ('branch','label')]
        if 'F' in cfg.ABL:
            r=[x for x in r if not (x.text.startswith('v_fma_f32') and 'v%d,'%vTm not in x.text.split()[1]) ]
            r=[x for x in r if not (x.text.startswith('v_add_f32 v%d'%vL1))]
        return r
    def rescale_check(j):
        ool.append([f"L_rare2_{j}:", "    s_nop 15", "    s_nop 7"]+
                   [f"    v_mul_f32 v{O+i}, v{O+i}, v{vALPHA}" for i in range(64)]+
                   [f"    s_mov_b32 s{sFLAG}, 0", "    s_nop 7", f"    s_branch L_back2_{j}"])
        return [Ins(f"s_cmp_lg_u32 s{sFLAG}, 0",'salu'), Ins(f"s_cbranch_scc1 L_rare2_{j}",'branch'), Ins(f"L_back2_{j}:",'label')]
    def finalize_l():
        return [valu(f"v_add_f32 v{t0}, v{vL0}, v{vL1}", V(vL0)+V(vL1), V(t0)),
                valu(f"v_mov_b32 v{t1}, v{t0}", V(t0), V(t1)),
                valu(f"v_permlane32_swap_b32 v{t0}, v{t1}", V(t0)+V(t1), V(t0)+V(t1), 'perm'),
                valu(f"v_add_f32 v{t0}, v{t0}, v{t1}", V(t0)+V(t1), V(t0)),
                valu(f"v_rcp_f32 v{vRINV}, v{t0}", V(t0), V(vRINV), 'trans')]
    def spread(vl, a, b, front=False):
        n=b-a; per=(len(vl)+n-1)//n; k=0
        for i in range(a,b):
            if front: ops[i]['valu']=vl[k:k+per]+ops[i]['valu']
            else: ops[i]['valu']+=vl[k:k+per]
            k+=per
    for j in range(-1,17):
        st=('p2',j); n0=len(ops)
        if 0<=j-1<=15:
            jj=j-1; pb=SB+32*(jj&1)
            for p in range(4):
                for t in range(4):
                    off=(jj&3)*16384+p*4096; first=(jj%8==0 and p==0)
                    ops.append(dict(step=st,
                        reads=(lambda f,t=t,off=off:[ds_read_tr(f,AV+t,off),ds_read_tr(f+2,AV+t,off+2048)]),
                        m=(lambda f,t=t,p=p,pb=pb,first=first: mfma(O+16*t,f,pb+8*p,None if first else O+16*t)), valu=[]))
        n1=len(ops)
        if j+1<=15:
            jj=j+1; sb=SB+32*(jj&1); Q=Q0 if jj<8 else Q1
            for kt,ks in ([(a,b) for a in range(2) for b in range(8)] if 'I' not in cfg.ABL else [(a,b) for b in range(8) for a in range(2)]):
                if True:
                    off=(jj&3)*16384+kt*8192
                    ops.append(dict(step=st,
                        reads=(lambda f,ks=ks,off=off:[ds_read_b128(f,AK+ks,off)]),
                        m=(lambda f,kt=kt,ks=ks,sb=sb,Q=Q: mfma(sb+16*kt,f,Q+4*ks,None if ks==0 else sb+16*kt)), valu=[]))
        n2=len(ops)
        vl=softmax(j) if 0<=j<=15 else []
        if j%8==7: vl=vl+finalize_l()
        if j==-1: vl=pack(Q1,O)
        if j==15:
            extra=[valu(f"v_lshrrev_b32 v{t2}, 9, v{vST}", V(vST), V(t2)),
                   valu(f"v_lshlrev_b32 v{t2}, 10, v{t2}", V(t2), V(t2))]
            for t in range(4):
                extra.append(valu(f"v_add_u32 v{AK+4+t}, v{AV+t}, v{t2}", V(AV+t)+V(t2), V(AK+4+t)))
                extra.append(valu(f"v_subrev_u32 v{AK+t}, 0x10000, v{AK+4+t}", V(AK+4+t), V(AK+t)))
            extra+=[valu(f"v_mov_b32 v{vDK}, 0x40000000",[],V(vDK)),
                    valu(f"v_cmp_gt_u32 vcc, 0x3c000, v{vDX}",V(vDX),[('s','vcc')]),
                    Ins("s_nop 1",'nop'),
                    valu(f"v_cndmask_b32 v{vDX}, v{vDK}, v{vST}, vcc",V(vDK)+V(vST),V(vDX))]
            vl=vl+extra
        if vl: spread(vl,n0,n2)
        if 1<=j<=15 and j%8!=0:
            if n1<n2: ops[n1]['valu']=rescale_check(j)+ops[n1]['valu']
            else: ops[n1-1]['post']=rescale_check(j)
        if j==8: spread(pack(Q0,O,vRINV), n1, n2)
        def bpf(j=j):
            tags=[]
            if 0<=j<=15: tags.append(('V',j))
            if j+2<=15: tags.append(('K',j+2))
            if j==16: tags+= [('O',0),('O',1)]
            bar(tags)
            if 4<=j+cfg.KD<=15: dmaK(j+cfg.KD)
            if 4<=j+cfg.VD<=15: dmaV(j+cfg.VD)
            for i,jj in ((0,8),(1,9),(2,11),(3,12),(4,13),(5,14),(6,13),(7,14),(8,15),(9,16)):
                if jj==j: dmaO(i)
        bp[st]=bpf
    spread(pack(Q0,SB), 8*32-3, 8*32+1, front=True)
    def ACC3(c): return SB if c%2==0 else O
    def store3(c):
        r=[salu(f"s_add_u32 s{sST}, s{sWSO}, {c*8192}", S(sWSO), S(sST))]
        acc=ACC3(c)
        for t in range(4):
            for h in range(2):
                base=acc+16*t+8*h; k=2*t+h
                for jj in range(4):
                    r.append(valu(f"v_cvt_pk_bf16_f32 v{base+jj}, v{base+2*jj}, v{base+2*jj+1}", V(base+2*jj,2), V(base+jj)))
                r.append(Ins(f"buffer_store_dwordx4 {vr(base,4)}, v{vDX}, s[{SRDS}:{SRDS+3}], s{sST} offen offset:{(k&3)*1024} {cfg.STPOL}",
                             'vmem_st', V(base,4)+V(vDX)+S(sST), []))
                if k==3: r.append(salu(f"s_add_u32 s{sST}, s{sWSO}, {c*8192+4096}", S(sWSO), S(sST)))
        return r
    p3start=len(ops)
    for q in range(8):
        st=('p3',q); n0=len(ops)
        for i in (2*q,2*q+1):
            c=i>>2; kt=i&3; sl=OSLOT[i%10]
            for p in range(4):
                for t in range(4):
                    if sl<4: areg=AK+t; off=sl*16384
                    elif sl<8: areg=AK+4+t; off=(sl-4)*16384
                    else: areg=AK+4+t; off=(sl-4)*16384
                    off+=p*4096
                    bb=(Q0+4*(4*kt+p)) if kt<2 else (Q1+4*(4*(kt-2)+p))
                    first=(kt==0 and p==0); acc=ACC3(c)+16*t
                    if sl>=8:
                        areg=('C',t); off=(sl-8)*16384+p*4096
                    ops.append(dict(step=st, areg=areg,
                        reads=(lambda f,areg=areg,off=off:[ds_read_tr(f,A3(areg),off),ds_read_tr(f+2,A3(areg),off+1024)]),
                        m=(lambda f,bb=bb,acc=acc,first=first: mfma(acc,f,bb,None if first else acc)), valu=[]))
        n2=len(ops)
        if q==0: spread(pack(Q1,O,vRINV), n0+2, n2-4)
        if q>=2 and q%2==0: spread(store3(q//2-1), n0+2, n0+20)
        def bpf(q=q):
            bar([('O',2*q+2),('O',2*q+3)])
            if 2*q+10<=15: dmaO(2*q+10); dmaO(2*q+11)
        bp[st]=bpf
    ops[-1]['post']=store3(3)
    C3=[t2,t3,t4,t5] if not cfg.STAMP else [t2,vM,vA2,vB2]
    def A3(a): return C3[a[1]] if isinstance(a,tuple) else a
    idx=[i for i,o in enumerate(ops) if o['step']==('p2',16)][0]
    for t in range(4):
        ops[idx]['valu'].append(valu(f"v_add_u32 v{C3[t]}, 0x10000, v{AK+4+t}", V(AK+4+t), V(C3[t])))

    N=len(ops)
    bar([('W',0),('W',1)])
    if cfg.STAMP:
        for k,sg in enumerate((96,98,100,78)): add(Ins(f"v_writelane_b32 v254, s{sg}, {50+k}", 'valu', [], V(254)))
    def fr(i): return FR+4*(i%NF)
    for i in range(D):
        for r in ops[i]['reads'](fr(i)): add(r)
    if cfg.GAP==0:
        while dq:
            for x in dq.pop(0): add(x)
    defer[0]=cfg.GAP>0 or cfg.STAG>0
    cnt=cfg.GAP; late=[]; lcount=[0]; lab=[0]
    def emit_guarded(groups, half, tracked):
        if not groups: return
        lab[0]+=1; L=f"L_stg{lab[0]}"
        add(salu(f"s_cmp_{'ge' if half==0 else 'lt'}_u32 s3, 4")); add(Ins(f"s_cbranch_scc1 {L}",'branch'))
        for g in groups:
            for x in g:
                if tracked or x.kind=='salu': add(x)
                else: add(Ins(x.text,'dmau' if x.kind=='dma' else 'other',x.rd,[]))
        add(Ins(f"{L}:",'label'))
    for i in range(N):
        if i+D<N:
            if ops[i+D]['step']!=ops[i+D-1]['step']:
                if late: emit_guarded(late,1,True); late=[]
                while dq:
                    for x in dq.pop(0): add(x)
                bp[ops[i+D-1]['step']](); cnt=cfg.GAP-1
                if cfg.STAG>0:
                    late=list(dq); dq.clear(); emit_guarded(late,0,False); lcount[0]=0
            for r in ops[i+D]['reads'](fr(i+D)): add(r)
        if late:
            lcount[0]+=1
            if lcount[0]>=cfg.STAG: emit_guarded(late,1,True); late=[]
        cnt+=1
        if dq and cnt>=cfg.GAP:
            for x in dq.pop(0): add(x)
            cnt=0
        for v in ops[i]['valu']: add(v)
        add(ops[i]['m'](fr(i)))
        for v in ops[i].get('post',[]): add(v)
    if cfg.STAMP:
        add(Ins("s_memtime s[80:81]", 'other')); add(Ins("s_memrealtime s[92:93]", 'other')); add(Ins("s_waitcnt lgkmcnt(0)", 'wait'))
        add(Ins(f"v_writelane_b32 v254, s86, 62", 'valu', [], V(254)))
        add(Ins(f"v_writelane_b32 v254, s92, 61", 'valu', [], V(254)))
        i=stamp_idx[0]
        add(Ins(f"v_writelane_b32 v255, s80, {i}", 'valu', [], V(255)))
        add(Ins(f"v_writelane_b32 v254, s82, {i-1}", 'valu', [], V(254)))
        add(Ins(f"v_writelane_b32 v254, s84, 63", 'valu', [], V(254)))
        add(salu("s_lshl_b32 s4, s2, 13")); add(salu(f"s_add_u32 s4, s4, s{sW1024}")); add(salu("s_add_u32 s4, s4, 0x4000000"))
        add(salu(f"s_mov_b32 s{SRDS+2}, 0x10000000"))
        add(Ins(f"v_lshrrev_b32 v{vST}, 2, v{vST}", 'valu', V(vST), V(vST)))
        add(Ins(f"buffer_store_dword v255, v{vST}, s[{SRDS}:{SRDS+3}], s4 offen", 'vmem_st', V(255)+V(vST), []))
        add(Ins(f"buffer_store_dword v254, v{vST}, s[{SRDS}:{SRDS+3}], s4 offen offset:256", 'vmem_st', V(254)+V(vST), []))
        add(Ins(f"buffer_store_dword v253, v{vST}, s[{SRDS}:{SRDS+3}], s4 offen offset:512", 'vmem_st', V(253)+V(vST), []))
    body=render(finalize(P))
    return body+"L_k1_end:\n    s_endpgm\n"+"\n".join("\n".join(b) for b in ool)+"\n"

def gen_k2():
    P=[]; add=P.append
    def sa(t, rd=(), wr=()): add(salu(t, rd, wr))
    def va(t, rd=(), wr=(), kind='valu'): add(valu(t, rd, wr, kind))
    add(Ins("s_cmp_ge_u32 s2, 1024", 'salu')); add(Ins("s_cbranch_scc1 L_k2_end", 'branch'))
    if 'h' in cfg.ABL:
        add(Ins("s_bitcmp1_b32 s2, 8", 'salu')); add(Ins("s_cbranch_scc1 L_k2_end", 'branch'))
    add(Ins("s_load_dwordx2 s[4:5], s[0:1], 80", 'other'))
    add(Ins("s_load_dwordx2 s[8:9], s[0:1], 96", 'other'))
    if cfg.MAP==0:
        sa("s_lshr_b32 s12, s2, 6")
        sa("s_bfe_u32 s13, s2, 0x30003")
        sa("s_and_b32 s14, s2, 7")
    else:
        sa("s_and_b32 s12, s2, 7"); sa("s_lshl_b32 s12, s12, 1"); sa("s_lshr_b32 s13, s2, 9"); sa("s_add_u32 s12, s12, s13")
        sa("s_bfe_u32 s13, s2, 0x30003")
        sa("s_bfe_u32 s14, s2, 0x30006"); sa("s_sub_u32 s14, 7, s14")
    sa("s_lshl_b32 s15, s12, 22"); sa("s_lshl_b32 s16, s13, 15"); sa("s_add_u32 s15, s15, s16")
    sa("s_lshl_b32 s16, s14, 12"); sa("s_add_u32 s15, s15, s16")
    va("v_lshlrev_b32 v1, 4, v0", V(0), V(1))
    va("v_and_b32 v2, 31, v0", V(0), V(2))
    sa("s_lshl_b32 s16, s13, 5")
    va("v_add_u32 v2, s16, v2", V(2), V(2))
    va("v_mov_b32 v6, 0x40000000", [], V(6))
    va("v_cmp_gt_u32 vcc, 240, v2", V(2), [('s','vcc')])
    add(Ins("s_waitcnt lgkmcnt(0)", 'wait'))
    sa("s_mov_b32 s6, 3932160"); sa("s_mov_b32 s7, 0x20000"); sa("s_mov_b32 s10, 67108864"); sa("s_mov_b32 s11, 0x20000")
    va("v_cndmask_b32 v1, v6, v1, vcc", V(1)+V(6), V(1))
    for hp in range(16):
        add(Ins(f"buffer_load_dwordx4 {vr(8+4*hp,4)}, v1, s[8:11], s15 offen {cfg.RPOL}", 'vmem_ld', V(1), V(8+4*hp,4)))
        if hp<15: sa("s_add_u32 s15, s15, 0x40000")
    va("v_bfe_u32 v3, v0, 5, 1", V(0), V(3))
    va("v_lshrrev_b32 v4, 6, v0", V(0), V(4))
    va("v_lshlrev_b32 v5, 11, v2", V(2), V(5))
    va("v_lshl_add_u32 v5, v4, 5, v5", V(4)+V(5), V(5))
    va("v_lshl_add_u32 v5, v3, 4, v5", V(3)+V(5), V(5))
    sa("s_and_b32 s16, s12, 7"); sa("s_mul_i32 s16, s16, 491520")
    sa("s_lshr_b32 s17, s12, 3"); sa("s_lshl_b32 s17, s17, 10"); sa("s_add_u32 s16, s16, s17")
    sa("s_lshl_b32 s17, s14, 7"); sa("s_add_u32 s16, s16, s17")
    va("v_cndmask_b32 v5, v6, v5, vcc", V(5)+V(6), V(5))
    A=72
    for hp in range(16):
        for i in range(4):
            x=8+4*hp+i
            if hp==0:
                va(f"v_lshlrev_b32 v{A+2*i}, 16, v{x}", V(x), V(A+2*i))
                va(f"v_and_b32 v{A+2*i+1}, 0xffff0000, v{x}", V(x), V(A+2*i+1))
            else:
                va(f"v_lshlrev_b32 v{80}, 16, v{x}", V(x), V(80))
                va(f"v_and_b32 v{81}, 0xffff0000, v{x}", V(x), V(81))
                va(f"v_add_f32 v{A+2*i}, v{A+2*i}, v80", V(A+2*i)+V(80), V(A+2*i))
                va(f"v_add_f32 v{A+2*i+1}, v{A+2*i+1}, v81", V(A+2*i+1)+V(81), V(A+2*i+1))
    for i in range(4):
        va(f"v_cvt_pk_bf16_f32 v{84+i}, v{A+2*i}, v{A+2*i+1}", V(A+2*i,2), V(84+i))
    add(Ins("buffer_store_dwordx4 v[84:87], v5, s[4:7], s16 offen", 'vmem_st', V(84,4)+V(5), []))
    return render(finalize(P))+"L_k2_end:\n    s_endpgm\n"

HEAD = open("cdna_kernels/"+NAME+".s.ref").read().split("; Override launch")[0]
def kd(name, vgpr, sgpr=102):
    return f""".amdhsa_kernel {name}
  .amdhsa_next_free_vgpr {vgpr}
  .amdhsa_next_free_sgpr {sgpr}
  .amdhsa_accum_offset {vgpr}
  .amdhsa_group_segment_fixed_size 0
  .amdhsa_kernarg_size 104
  .amdhsa_user_sgpr_count 2
  .amdhsa_user_sgpr_kernarg_segment_ptr 1
  .amdhsa_system_sgpr_workgroup_id_x 1
.end_amdhsa_kernel
"""
def build():
    s=HEAD
    s+="; @launch kernel=attn_kernel grid=(256,1,1) block=(512,1,1) lds=163840\n"
    s+="; @launch kernel=reduce_kernel grid=(1024,1,1) block=(256,1,1) lds=0\n"
    s+='.amdgcn_target "amdgcn-amd-amdhsa--gfx950"\n.text\n'
    s+=".globl attn_kernel\n.p2align 8\n.type attn_kernel,@function\nattn_kernel:\n"+gen_k1()
    s+=".globl reduce_kernel\n.p2align 8\n.type reduce_kernel,@function\nreduce_kernel:\n"+gen_k2()
    s+='.section .rodata,"a"\n.p2align 6\n'+kd("attn_kernel",256)+".p2align 6\n"+kd("reduce_kernel",88,32)
    return s
if __name__=="__main__":
    out=sys.argv[1]
    for a in sys.argv[2:]:
        k,_,v=a.partition("=")
        if k=="stamp": cfg.STAMP=True
        elif k in ("D","PRIO","GAP","KD","VD","MAP","STAG"): setattr(cfg,k,int(v))
        else: setattr(cfg,k,v.replace("+"," "))
    open(out,"w").write(build()); print("wrote",out)
```
